```python
import torch

def _softmax(x, axis=-1):
    return torch.softmax(x, dim=axis)

def _gelu(x):
    return torch.nn.functional.gelu(x, approximate='tanh')

def _silu(x):
    return torch.nn.functional.silu(x)

def _sigmoid(x):
    return torch.sigmoid(x)

def _layernorm(x, axis=-1, eps=1e-05):
    m = x.mean(dim=axis, keepdim=True)
    v = x.var(dim=axis, keepdim=True, unbiased=False)
    return (x - m) / torch.sqrt(v + eps)

def _scatter_add(tgt, idx, src, axis=0):
    return tgt.clone().index_add_(axis, idx, src)

def _segment_sum(src, seg, n):
    out = torch.zeros((n,) + src.shape[1:], dtype=src.dtype)
    return out.index_add_(0, seg, src)

def _pad(x, pw):
    flat = tuple((v for pair in reversed(pw) for v in pair))
    return torch.nn.functional.pad(x, flat)
kernel_name = 'parallel_sum__sliding_block__mixer_gmlp__prompt'

def setup_inputs():

    _w = lambda a: (lambda t: t.to(torch.bfloat16) if t.is_floating_point() else t)(torch.as_tensor(a))

    def _A_setup():
        B, S, D = (1, 2048, 576)
        return {'x': _w((lambda *s: torch.randn(*s, dtype=torch.bfloat16) * 0.05)(B, S, D)), 'wqkv': _w((lambda *s: torch.randn(*s, dtype=torch.bfloat16) * 0.1)(D, 3 * D)), 'wo': _w((lambda *s: torch.randn(*s, dtype=torch.bfloat16) * 0.05)(D, D))}
    _A_in = _A_setup()

    def _B_setup():
        B, S, D, F = (1, 2048, 576, 4608)
        Fh = F // 2
        return {'x': _w((lambda *s: torch.randn(*s, dtype=torch.bfloat16) * 0.05)(B, S, D)), 'w_in': _w((lambda *s: torch.randn(*s, dtype=torch.bfloat16) * 0.4)(D, 2 * Fh)), 'w_sp': _w(0.01 * (lambda *s: torch.randn(*s, dtype=torch.bfloat16) * 0.4)(S, S)), 'b_sp': _w(1.0 + 0.01 * (lambda *s: torch.randn(*s, dtype=torch.bfloat16) * 0.05)(S)), 'w_out': _w((lambda *s: torch.randn(*s, dtype=torch.bfloat16) * 0.05)(Fh, D))}
    _B_in = _B_setup()
    return {'A_x': _A_in['x'], 'A_wqkv': _A_in['wqkv'], 'A_wo': _A_in['wo'], 'B_x': _B_in['x'], 'B_w_in': _B_in['w_in'], 'B_w_sp': _B_in['w_sp'], 'B_b_sp': _B_in['b_sp'], 'B_w_out': _B_in['w_out']}

def reference(A_x, A_wqkv, A_wo, B_x, B_w_in, B_w_sp, B_b_sp, B_w_out):

    def _A_ref(x, wqkv, wo):
        B, S, D = x.shape
        H = 32
        Dh = D // H
        W = 256
        qkv = (lambda x, *d: x.permute(*d))((x @ wqkv).reshape(B, S, 3, H, Dh), 2, 0, 3, 1, 4)
        q, k, v = (qkv[0], qkv[1], qkv[2])
        scores = torch.einsum('bhqd,bhkd->bhqk', q, k) * Dh ** (-0.5)
        idx = torch.arange(S)
        mask = (idx[:, None] - idx[None, :] >= 0) & (idx[:, None] - idx[None, :] < W)
        scores = torch.where(mask[None, None], scores, -1000000000.0)
        p = _softmax(scores, axis=-1)
        o = torch.einsum('bhqk,bhkd->bhqd', p, v)
        return (lambda x, *d: x.permute(*d))(o, 0, 2, 1, 3).reshape(B, S, D) @ wo

    def _B_ref(x, w_in, w_sp, b_sp, w_out):
        B, S, D = x.shape
        F = w_in.shape[-1]
        Fh = F // 2
        z = _gelu(torch.einsum('bsd,df->bsf', x, w_in))
        z1 = z[..., :Fh].clone()
        z2 = _layernorm(z[..., Fh:], axis=-1)
        g = torch.einsum('ts,bsf->btf', w_sp, z2) + b_sp[None, :, None]
        return torch.einsum('bsf,fd->bsd', z1 * g, w_out)
    x = A_x
    xn = _layernorm(x, axis=-1)
    return x + _A_ref(xn, A_wqkv, A_wo) + _B_ref(xn, B_w_in, B_w_sp, B_b_sp, B_w_out)
```

```python
HEADER = """; Kernarg layout for this problem (88 bytes, ptrs only, base s[0:1]):
"""

KARG = dict(x=0, wqkv=8, wo=16, bx=24, win=32, wsp=40, bsp=48, wout=56, out=64, dbg=72, ws=80)
SIZES = dict(x=2048*576*2, wqkv=576*1728*2, wo=576*576*2, bx=2048*576*2, win=576*4608*2,
             wsp=2048*2048*2, bsp=2048*2, wout=2304*576*2, out=2048*576*2, dbg=256, ws=268435456)


def vr(a, n=1):
    return f"v{a}" if n == 1 else f"v[{a}:{a+n-1}]"


def ar(a, n=1):
    return f"a{a}" if n == 1 else f"a[{a}:{a+n-1}]"


def sr(a, n=1):
    return f"s{a}" if n == 1 else f"s[{a}:{a+n-1}]"


class Kern:
    def __init__(self, name, grid, block, lds, vgpr, agpr=0, sgpr=96):
        self.name, self.grid, self.block, self.lds = name, grid, block, lds
        self.vgpr, self.agpr, self.sgpr = vgpr, agpr, sgpr
        self.L = []
        self._lab = 0

    def e(self, s):
        for line in s.strip("\n").split("\n"):
            line = line.strip()
            if not line:
                continue
            if line.endswith(":"):
                self.L.append(line)
            else:
                self.L.append("    " + line)

    __call__ = e

    def label(self, base="L"):
        self._lab += 1
        return f"{self.name}_{base}{self._lab}"

    def srd(self, s, key, size=None, off=0, tmp=None):
        self.e(f"s_load_dwordx2 s[{s}:{s+1}], s[0:1], {KARG[key]}")

    def srd_fin(self, s, key, size=None, off=0):
        if off:
            self.e(f"s_add_u32 s{s}, s{s}, {off}")
            self.e(f"s_addc_u32 s{s+1}, s{s+1}, 0")
        self.e(f"s_and_b32 s{s+1}, s{s+1}, 0xffff")
        n = size if size is not None else SIZES[key] - off
        assert off + n <= SIZES[key]
        self.e(f"s_mov_b32 s{s+2}, {n}")
        self.e(f"s_mov_b32 s{s+3}, 0x00020000")

    def text(self):
        return "\n".join([f".globl {self.name}", ".p2align 8", f".type {self.name},@function",
                          f"{self.name}:"] + self.L) + "\n"

    def desc(self):
        acc = (self.vgpr + 3) // 4 * 4
        nfv = acc + self.agpr if self.agpr else self.vgpr
        return "\n".join([
            ".p2align 6", f".amdhsa_kernel {self.name}",
            f"  .amdhsa_next_free_vgpr {nfv}", f"  .amdhsa_next_free_sgpr {self.sgpr}",
            f"  .amdhsa_accum_offset {acc}", "  .amdhsa_group_segment_fixed_size 0",
            "  .amdhsa_kernarg_size 88", "  .amdhsa_user_sgpr_count 2",
            "  .amdhsa_user_sgpr_kernarg_segment_ptr 1", "  .amdhsa_system_sgpr_workgroup_id_x 1",
            ".end_amdhsa_kernel"]) + "\n"


def build(kernels, launches=None):
    launches = launches or kernels
    s = HEADER
    for k in launches:
        s += f"; @launch kernel={k.name} grid=({k.grid},1,1) block=({k.block},1,1) lds={k.lds}\n"
    s += '.amdgcn_target "amdgcn-amd-amdhsa--gfx950"\n.text\n'
    for k in kernels:
        s += k.text()
    s += '.section .rodata,"a"\n'
    for k in kernels:
        s += k.desc()
    return s
```

```python
from common import *


def maskbits(jq, jk, r):
    m = 0
    for l in range(64):
        a = perm(jq, l & 15)
        b = 8 * (l >> 4) + 4 * jk + r
        if a >= b:
            m |= 1 << l
    return m


def gen_at(stamp=False, kidx=1, prefetch=True, w3=True):
    k = Kern("at_kernel", 256, 256, 4 * 5120, 200, agpr=176, sgpr=102)
    st = Stamps(k, stamp, kidx)
    e = k.e
    e("s_cmp_ge_u32 s2, 256\ns_cbranch_scc1 at_end")
    st.begin()
    k.srd(8, "ws"); k.srd(28, "wout"); k.srd(36, "wo"); k.srd(32, "wsp")
    e("v_lshrrev_b32 v2, 6, v0\nv_and_b32 v1, 63, v0")
    e("s_nop 0\nv_readfirstlane_b32 s3, v2")
    e("""s_bfe_u32 s4, s2, 0x20001
    s_lshl_b32 s4, s4, 3
    s_bfe_u32 s6, s2, 0x30003
    s_add_u32 s4, s4, s6
    s_and_b32 s5, s2, 1
    s_lshl_b32 s5, s5, 4
    s_lshr_b32 s6, s2, 6
    s_lshl_b32 s6, s6, 2
    s_add_u32 s5, s5, s6
    s_add_u32 s5, s5, s3
    s_lshl_b32 s5, s5, 1
    v_lshlrev_b32 v2, 4, v1
    v_mul_u32_u24 v3, 12, v1
    v_and_b32 v4, 15, v1
    v_lshlrev_b32 v4, 6, v4
    v_lshrrev_b32 v5, 4, v1
    v_lshl_add_u32 v4, v5, 4, v4
    s_lshl_b32 s6, s4, 6
    s_add_u32 s7, s6, s5
    s_mul_i32 s7, s7, 1536""")
    for u in range(10):
        e(f"s_add_i32 s38, s5, {u-8}\ns_max_i32 s39, s38, 0\ns_add_u32 s39, s39, s6\ns_mul_i32 s{40+u}, s39, 2688")
    e("s_waitcnt lgkmcnt(0)")
    for s in (12, 16, 20, 24):
        e(f"s_mov_b64 s[{s}:{s+1}], s[8:9]")
    k.srd_fin(8, "ws", size=SZ_Q, off=OFF_Q)
    k.srd_fin(12, "ws", size=SZ_KV, off=OFF_KV)
    KA, VA, TA, QA = 0, 80, 120, 160
    vm = Trk(k, "vmcnt", 63)
    for f in range(4):
        e(f"buffer_load_dwordx3 a[{QA+4*f}:{QA+4*f+2}], v3, s[8:11], s7 offen offset:{768*f}")
        vm.issue('q')
    for u in range(10):
        for j in range(2):
            e(f"buffer_load_dwordx3 a[{KA+8*u+4*j}:{KA+8*u+4*j+2}], v3, s[12:15], s{40+u} offen offset:{768*j}")
            vm.issue(('k', u))
    e("v_mov_b32 v6, 0x3f803f80")
    for r in range(40):
        e(f"v_accvgpr_write_b32 a{TA+r}, v6")
    for u in range(10):
        e(f"buffer_load_dwordx4 a[{VA+4*u}:{VA+4*u+3}], v2, s[12:15], s{40+u} offen offset:1536")
        vm.issue(('v', u))
    e("s_mov_b32 exec_lo, 0x00030003\ns_mov_b32 exec_hi, 0x00030003")
    for u in range(10):
        e(f"buffer_load_dwordx4 a[{TA+4*u}:{TA+4*u+3}], v4, s[12:15], s{40+u} offen offset:2560")
        vm.issue(('v', u))
    e("s_mov_b64 exec, -1")
    for f in range(4):
        e(f"v_accvgpr_write_b32 a{QA+4*f+3}, v6")
    for u in range(10):
        if u < 8:
            e(f"s_add_i32 s38, s5, {u-8}\ns_cmp_lt_i32 s38, 0\ns_cselect_b32 s38, 0xf149f149, 0\nv_mov_b32 v7, s38")
            src = "v7"
        else:
            src = "0"
        for j in range(2):
            e(f"v_accvgpr_write_b32 a{KA+8*u+4*j+3}, {src}")
    k.srd_fin(16, "ws", size=SZ_OM, off=OFF_OM)
    k.srd_fin(20, "ws", size=SZ_OT, off=OFF_OT)
    k.srd_fin(24, "ws", size=SZ_W3, off=OFF_W3)
    k.srd_fin(32, "wsp")
    if w3:
        e("""s_lshl_b32 s50, s2, 2
        s_add_u32 s50, s50, s3
        s_sub_u32 s53, s50, 512
        s_cmp_ge_u32 s50, 736
        s_cselect_b32 s53, s53, s50
        s_mul_i32 s51, s53, 2850
        s_lshr_b32 s51, s51, 16
        s_mul_i32 s52, s51, 23
        s_sub_u32 s52, s53, s52
        s_lshr_b32 s53, s51, 2
        s_and_b32 s51, s51, 3""")
        e("""s_sub_u32 s54, s52, 1
        s_lshr_b32 s55, s54, 2
        s_mul_i32 s55, s55, 144
        s_and_b32 s54, s54, 3
        s_lshl_b32 s54, s54, 5
        s_add_u32 s54, s54, s55
        s_mul_i32 s55, s51, 576
        s_add_u32 s54, s54, s55
        s_mov_b32 s56, 16
        s_mov_b32 s57, 4
        s_sub_u32 s58, s52, 17
        s_mul_i32 s58, s58, 288
        s_add_u32 s58, s58, s55
        s_add_u32 s58, s58, 128
        s_cmp_ge_u32 s52, 17
        s_cselect_b32 s54, s58, s54
        s_cselect_b32 s56, 144, s56
        s_sub_u32 s58, s52, 19
        s_mul_i32 s58, s58, 36
        s_mul_i32 s59, s51, 144
        s_add_u32 s58, s58, s59
        s_cmp_ge_u32 s52, 19
        s_cselect_b32 s54, s58, s54
        s_cselect_b32 s56, 20, s56
        s_cselect_b32 s60, 1, 0
        s_and_b32 s58, s51, 1
        s_mul_i32 s58, s58, 288
        s_add_u32 s58, s58, 16
        s_cmp_eq_u32 s52, 0
        s_cselect_b32 s54, s58, s54
        s_cselect_b32 s56, 36, s56
        s_cselect_b32 s57, 72, s57
        s_cselect_b32 s60, 1, s60
        s_cmp_eq_u32 s60, 1
        s_cselect_b32 s28, s36, s28
        s_cselect_b32 s29, s37, s29""")
        e(f"s_mov_b32 s30, {SIZES['wout']}\ns_cselect_b32 s30, {SIZES['wo']}, s30\ns_and_b32 s29, s29, 0xffff\ns_mov_b32 s31, 0x00020000")
        e("s_mul_i32 s54, s54, 1152\ns_mul_i32 s58, s53, 144\ns_add_u32 s54, s54, s58")
        e("s_mul_i32 s56, s56, 1152\ns_mul_i32 s57, s57, 1152\ns_mul_i32 s59, s3, 5120")
        for p in range(5):
            e(f"""v_add_u32 v8, {64*p}, v1
            v_mul_u32_u24 v9, 7282, v8
            v_lshrrev_b32 v9, 16, v9
            v_mul_u32_u24 v10, 9, v9
            v_sub_u32 v10, v8, v10
            v_lshlrev_b32 v10, 4, v10
            v_and_b32 v8, 3, v9
            v_mul_u32_u24 v8, 1152, v8
            v_add_u32 v10, v10, v8
            v_bfe_u32 v8, v9, 2, 2
            v_mul_u32_u24 v8, s57, v8
            v_add_u32 v10, v10, v8
            v_bfe_u32 v8, v9, 4, 1
            v_mul_u32_u24 v8, s56, v8
            v_add_u32 v10, v10, v8
            s_add_u32 m0, s59, {1024*p}""")
            if p == 4:
                e("s_mov_b32 exec_hi, 0")
            else:
                e("s_nop 0")
            e("buffer_load_dwordx4 v10, s[28:31], s54 offen lds")
        e("s_mov_b64 exec, -1")
    if prefetch:
        e("s_lshl_b32 s61, s2, 2\ns_add_u32 s61, s61, s3\ns_lshl_b32 s61, s61, 13\ns_add_u32 s62, s61, 4096")
        for q in range(8):
            e(f"buffer_load_dwordx4 v[12:15], v2, s[32:35], s{61+q//4} offen offset:{(q%4)*1024}")
    extra = (8 if prefetch else 0) + (5 if w3 else 0)
    for _ in range(extra):
        vm.issue('x')
    MK = 16
    S = [24, 96]
    TM = 168
    OM, OT = 176, 184
    PK = 192
    e(f"""v_and_b32 v8, 15, v1
    v_lshrrev_b32 v9, 2, v8
    v_lshlrev_b32 v9, 3, v9
    v_and_b32 v8, 3, v8
    v_add_u32 v8, v8, v9
    v_lshrrev_b32 v9, 4, v1
    v_lshlrev_b32 v9, 3, v9
    v_sub_u32 v5, v8, v9""")
    msk = {}
    pool = [40, 42, 44, 46, 48, 62, 64, 66, 68, 70, 72, 74]
    for th in range(-4, 8):
        msk[th] = pool[th + 4]
        m = 0
        for l in range(64):
            d = perm(0, l & 15) - 8 * (l >> 4)
            if d >= th:
                m |= 1 << l
        e(f"s_mov_b32 s{msk[th]}, {m & 0xffffffff:#x}\ns_mov_b32 s{msk[th]+1}, {m >> 32:#x}")
    e("v_mov_b32 v8, 0xffff\nv_mov_b32 v9, 0xffff0000")
    for jq in range(2):
        for jk in range(2):
            for rp in range(2):
                th = 4 * jk + 2 * rp - 4 * jq
                d = MK + 4 * jq + 2 * jk + rp
                e(f"v_cndmask_b32 v{d}, 0, v8, s[{msk[th]}:{msk[th]+1}]")
                e(f"v_cndmask_b32 v10, 0, v9, s[{msk[th+1]}:{msk[th+1]+1}]")
                e(f"v_or_b32 v{d}, v{d}, v10")
    e("s_mov_b32 s76, 0x3eae1a93")
    e("""s_lshl_b32 s6, s5, 5
    s_add_u32 s6, s6, s4
    s_lshl_b32 s6, s6, 10
    s_add_u32 s7, s6, 32768
    s_lshl_b32 s38, s5, 12
    s_lshr_b32 s39, s4, 4
    s_lshl_b32 s39, s39, 11
    s_add_u32 s38, s38, s39
    s_bfe_u32 s39, s4, 0x20002
    s_lshl_b32 s39, s39, 8
    s_add_u32 s38, s38, s39
    s_and_b32 s39, s4, 3
    s_lshl_b32 s39, s39, 2
    s_add_u32 s38, s38, s39
    s_add_u32 s39, s38, 4096""")

    def A(n):
        gq, jq = n >> 1, n & 1
        L = []
        for up in range(9):
            u = gq + up
            L.append(lambda u=u: (vm.wait('q'), vm.wait(('k', u))))
            for jk in range(2):
                c = S[n & 1] + 8 * up + 4 * jk
                L.append(f"v_mfma_f32_16x16x32_bf16 v[{c}:{c+3}], a[{KA+8*u+4*jk}:{KA+8*u+4*jk+3}], a[{QA+4*n}:{QA+4*n+3}], 0")
        return L

    def D(n):
        gq, jq = n >> 1, n & 1
        L = [lambda: vm.wait(('v', 9))]
        for up in range(9):
            u = gq + up
            p = S[n & 1] + 8 * up
            for o, a in ((OM, VA), (OT, TA)):
                c = o + 4 * jq
                L.append(f"v_mfma_f32_16x16x32_bf16 v[{c}:{c+3}], a[{a+4*u}:{a+4*u+3}], v[{p}:{p+3}], {'0' if up == 0 else f'v[{c}:{c+3}]'}")
        return L

    def BC(n):
        gq, jq = n >> 1, n & 1
        s = S[n & 1]
        L = []
        for jk in range(2):
            for r in range(4):
                m = msk[4 * jk + r - 4 * jq]
                L.append(f"v_cndmask_b32 v{s+64+4*jk+r}, v{s+4*jk+r}, v{s+64+4*jk+r}, s[{m}:{m+1}]")
        for c in range(4):
            b = s + 8 + 16 * c
            L.append(f"v_max3_f32 v{TM+c}, v{b}, v{b+1}, v{b+2}")
        for i in range(3, 15, 2):
            for c in range(4):
                b = s + 8 + 16 * c
                L.append(f"v_max3_f32 v{TM+c}, v{TM+c}, v{b+i}, v{b+i+1}")
        L.append(f"v_max3_f32 v{TM}, v{TM}, v{s+8+15}, v{s+8+31}")
        L.append(f"v_max3_f32 v{TM+2}, v{TM+2}, v{s+8+47}, v{s+8+63}")
        L.append(f"v_max3_f32 v{TM}, v{TM}, v{TM+1}, v{TM+3}")
        L.append(f"v_max_f32 v{TM}, v{TM}, v{TM+2}")
        L.append(f"v_mov_b32 v{TM+1}, v{TM}\ns_nop 1\nv_permlane16_swap_b32 v{TM}, v{TM+1}")
        L.append(f"v_max_f32 v{TM}, v{TM}, v{TM+1}")
        L.append(f"v_mov_b32 v{TM+1}, v{TM}\ns_nop 1\nv_permlane32_swap_b32 v{TM}, v{TM+1}")
        L.append(f"v_max_f32 v{TM}, v{TM}, v{TM+1}")
        L.append(f"v_mul_f32 v{TM}, s76, v{TM}")
        for up in (8, 1, 2, 3, 4, 5, 6, 7):
            b = s + 8 * up
            L += [f"v_fma_f32 v{b+i}, v{b+i}, s76, -v{TM}" for i in range(8)]
            L += [f"v_exp_f32 v{b+i}, v{b+i}" for i in range(8)]
            L += [f"v_cvt_pk_bf16_f32 v{b+i}, v{b+2*i}, v{b+2*i+1}" for i in range(4)]
            if up == 8:
                L += [f"v_bfi_b32 v{s+i}, v{MK+4*jq+i}, 0, v{b+i}" for i in range(4)]
                L += [f"v_and_b32 v{b+i}, v{MK+4*jq+i}, v{b+i}" for i in range(4)]
        return L

    def E(n):
        gq, jq = n >> 1, n & 1
        o, t = OM + 4 * jq, OT + 4 * jq
        L = [f"v_rcp_f32 v{t+2}, v{t+2}\ns_nop 0"]
        L += [f"v_mul_f32 v{o+r}, v{o+r}, v{t+2}" for r in range(4)]
        L += [f"v_mul_f32 v{t+r}, v{t+r}, v{t+2}" for r in range(2)]
        L += [f"v_cvt_pk_bf16_f32 v{PK+4*gq+2*jq+h}, v{o+2*h}, v{o+2*h+1}" for h in range(2)]
        L += [f"v_cvt_pk_bf16_f32 v{t+3}, v{t}, v{t+1}"]
        L.append(f"s_mov_b64 exec, 0xffff\nbuffer_store_dword v{t+3}, v2, s[20:23], s{38+gq} offen offset:{1024*jq}\ns_mov_b64 exec, -1")
        if jq == 1:
            L.append(f"buffer_store_dwordx4 v[{PK+4*gq}:{PK+4*gq+3}], v2, s[16:19], s{6+gq} offen")
        return L

    def emit(x):
        x() if callable(x) else e(x)

    def weave(V, M, rate):
        M = list(M)
        for i, x in enumerate(V):
            if i % rate == 0:
                while M and callable(M[0]):
                    M.pop(0)()
                if M:
                    e(M.pop(0))
            emit(x)
        assert not M

    for x in A(0):
        emit(x)
    st.mid(0)
    e("s_nop 7")
    for n in range(4):
        M = (D(n - 1) if n else []) + (A(n + 1) if n < 3 else [])
        V = BC(n) + (E(n - 1) if n else ["s_nop 1"])
        weave(V[:8], [], 1)
        weave(V[8:], M, 4)
    e("s_nop 1")
    for x in D(3):
        emit(x)
    e("s_nop 7\ns_nop 1")
    for x in E(3):
        emit(x)
    st.mid(1)
    if w3:
        e("s_cmp_ge_u32 s50, 736\ns_cbranch_scc1 at_now3b")
        e(f"""v_lshrrev_b32 v8, 2, v1
        v_mul_u32_u24 v8, 144, v8
        v_add_u32 v8, s59, v8
        v_and_b32 v9, 1, v1
        v_lshl_add_u32 v9, v9, 3, v8
        v_and_b32 v10, 3, v1
        v_lshl_add_u32 v8, v10, 4, v8
        v_lshrrev_b32 v10, 4, v1
        v_lshlrev_b32 v10, 3, v10
        v_and_b32 v11, 7, v1
        v_add_u32 v10, v10, v11
        v_lshlrev_b32 v10, 4, v10
        s_mul_i32 s51, s50, 4608
        s_add_u32 s52, s51, 4096
        s_waitcnt vmcnt(0)""")
        B = S[0]
        for t in range(4):
            for hh in range(2):
                e(f"ds_read_b64_tr_b16 v[{B+4*t+2*hh}:{B+4*t+2*hh+1}], v8 offset:{hh*16*144 + 64*(t>>1) + 8*(t&1)}")
        for hh in range(2):
            e(f"ds_read_b64_tr_b16 v[{B+16+2*hh}:{B+16+2*hh+1}], v9 offset:{hh*16*144 + 128}")
        for t in range(4):
            e(f"s_waitcnt lgkmcnt({8-2*t})")
            e(f"buffer_store_dwordx4 v[{B+4*t}:{B+4*t+3}], v2, s[24:27], s51 offen offset:{1024*t}")
        e("s_waitcnt lgkmcnt(0)\ns_mov_b32 exec_lo, 0x00ff00ff\ns_mov_b32 exec_hi, 0x00ff00ff")
        e(f"buffer_store_dwordx4 v[{B+16}:{B+19}], v10, s[24:27], s52 offen")
        e("s_mov_b64 exec, -1")
        e("at_now3b:")
    e("s_waitcnt vmcnt(0)")
    if stamp:
        e("s_cmp_lg_u32 s3, 0\ns_cbranch_scc1 at_end")
        st.end(24)
    e("at_end:\ns_endpgm")
    return k


if __name__ == "__main__":
    open("t_at.s", "w").write(build([gen_at(stamp=True)]))
```

```python
from asmlib import *

OFF_Z2R = 0x0000000
OFF_Z2N = 0x0A00000
OFF_Z1 = 0x1400000
OFF_H = 0x1E00000
OFF_ST = 0x2800000
OFF_Q = 0x2900000
OFF_KV = 0x2D00000
OFF_OM = 0x3300000
OFF_OT = 0x3500000
OFF_W3 = 0x3600000
SZ_Z = 16 * 64 * 9216
SZ_ST = 64 * 16 * 512
SZ_Q = 32 * 64 * 1536
SZ_KV = 32 * 64 * 2688
SZ_OM = 64 * 32 * 1024
SZ_OT = 64 * 4 * 1024
SZ_W3 = 8 * 4 * 23 * 4608
STAMP_OFF = 64 << 20
STAMP_K = 2048 * 64


def perm(j, i):
    return 8 * (i >> 2) + 4 * j + (i & 3)


class Stamps:
    def __init__(self, k, on, kidx):
        self.k, self.on, self.kidx = k, on, kidx

    def begin(self):
        if not self.on:
            return
        k = self.k
        k.e("s_memrealtime s[84:85]\ns_memtime s[86:87]")
        k.e(f"s_load_dwordx2 s[80:81], s[0:1], {KARG['ws']}")

    def mid(self, i):
        if self.on:
            self.k.e(f"s_memtime s[{92+2*i}:{93+2*i}]")

    def end(self, vt):
        if not self.on:
            return
        k = self.k
        k.e("s_memrealtime s[88:89]\ns_memtime s[90:91]\ns_waitcnt lgkmcnt(0)")
        k.srd_fin(80, "ws", size=STAMP_K, off=STAMP_OFF + self.kidx * STAMP_K)
        for i in range(12):
            k.e(f"v_mov_b32 v{vt+i}, s{84+i}")
        k.e(f"s_lshl_b32 s98, s2, 6\nv_mov_b32 v{vt+12}, s98")
        k.e("s_mov_b64 exec, 1")
        for q in range(3):
            k.e(f"buffer_store_dwordx4 v[{vt+4*q}:{vt+4*q+3}], v{vt+12}, s[80:83], 0 offen offset:{16*q}")
        k.e("s_mov_b64 exec, -1")


class Trk:
    def __init__(self, k, name, mx):
        self.k, self.name, self.mx, self.q = k, name, mx, []

    def issue(self, tag=None):
        self.q.append(tag)

    def pending(self, tag):
        return tag in self.q

    def wait(self, tag):
        if tag not in self.q:
            return
        last = len(self.q) - 1 - self.q[::-1].index(tag)
        n = min(len(self.q) - 1 - last, self.mx)
        self.k.e(f"s_waitcnt {self.name}({n})")
        self.q = self.q[len(self.q) - n:] if n else []

    def drain(self):
        self.k.e(f"s_waitcnt {self.name}(0)")
        self.q = []
```

```python
from common import *

STG = 18432
RING = 6
PARK = RING * STG
XST = 73728
SCR = 155648
LDS = SCR + 4608
X0, B0, B1, WIN, TMP = 16, 160, 200, 232, 248
LEAD = 4


def gen_g1(stamp=False, kidx=0, rateA=(4, 3), rateB=(3, 4), nogelu=False):
    k = Kern("g1_kernel", 256, 512, LDS, 256, sgpr=102)
    st = Stamps(k, stamp, kidx)
    e = k.e
    e("s_cmp_ge_u32 s2, 256\ns_cbranch_scc1 g1_end")
    st.begin()
    k.srd(8, "x"); k.srd(12, "win"); k.srd(16, "wqkv"); k.srd(20, "ws"); k.srd(40, "dbg")
    e("s_memrealtime s[52:53]")
    e("v_lshrrev_b32 v2, 6, v0\nv_and_b32 v1, 63, v0")
    e("s_nop 0\nv_readfirstlane_b32 s3, v2")
    e("""s_and_b32 s4, s2, 1
    s_lshl_b32 s4, s4, 3
    s_bfe_u32 s6, s2, 0x30003
    s_add_u32 s4, s4, s6
    s_bfe_u32 s5, s2, 0x20001
    s_lshl_b32 s5, s5, 2
    s_lshr_b32 s6, s2, 6
    s_add_u32 s5, s5, s6
    s_and_b32 s44, s3, 3
    v_lshlrev_b32 v2, 4, v1
    v_lshrrev_b32 v3, 3, v1
    v_mul_u32_u24 v3, 1152, v3
    v_and_b32 v4, 7, v1
    v_lshlrev_b32 v4, 4, v4
    v_add_u32 v3, v3, v4
    s_lshl_b32 s6, s4, 3
    s_add_u32 s6, s6, s3
    s_mul_i32 s6, s6, 18432
    s_add_u32 s7, s6, 9216
    s_waitcnt lgkmcnt(0)""")
    k.srd_fin(8, "x")
    for u in range(9):
        for h in range(2):
            d = B0 + 36 * h + 4 * u
            e(f"buffer_load_dwordx4 v[{d}:{d+3}], v3, s[8:11], s{6+h} offen offset:{u*128}")
    k.srd_fin(12, "win"); k.srd_fin(16, "wqkv"); k.srd_fin(40, "dbg")
    for s in (24, 28, 32, 36):
        e(f"s_mov_b64 s[{s}:{s+1}], s[20:21]")
    k.srd_fin(20, "ws", size=SZ_Z, off=OFF_Z2N)
    k.srd_fin(24, "ws", size=SZ_Z, off=OFF_Z1)
    k.srd_fin(28, "ws", size=SZ_Q, off=OFF_Q)
    k.srd_fin(32, "ws", size=SZ_KV, off=OFF_KV)
    k.srd_fin(36, "ws", size=SZ_ST, off=OFF_ST)
    e("""s_mul_i32 s54, s5, 288
    s_add_u32 s55, s54, 4608
    s_mul_i32 s56, s5, 72
    s_and_b32 s57, s56, 15
    s_and_b32 s56, s56, 0xfffffff0
    s_mov_b32 s47, 0xbdd2d3e8
    s_mov_b32 s50, 0x3f803f80
    s_lshl_b32 s58, s4, 2
    s_add_u32 s58, s58, s44""")
    e("s_cmp_ge_u32 s3, 4\ns_cbranch_scc1 g1_pathB")
    info = {}
    LB = None
    saved = k.L
    bodies = {}
    for hf in (1, 0):
        k.L = []
        body(k, st, hf, info, rateA if hf == 0 else rateB, stamp, nogelu)
        bodies[hf] = k.L
    k.L = saved + bodies[0] + ["g1_pathB:"] + bodies[1]
    e("g1_end:\ns_endpgm")
    return k


def body(k, st, hf, info, rate, stamp, nogelu):
    e = k.e
    vm = Trk(k, "vmcnt", 63)
    lg = Trk(k, "lgkmcnt", 15)
    for u in range(9):
        for h in range(2):
            vm.issue(("x", u))
    npc = 2 + hf
    if hf == 0:
        e("s_lshl_b32 s6, s44, 7")
    else:
        e("s_mul_i32 s6, s44, 160\ns_add_u32 s6, s6, 512")
    e("s_lshl_b32 s46, s6, 4")
    T = TMP
    for p in range(npc):
        e(f"""v_add_u32 v{T}, s6, v1
        v_add_u32 v{T}, {64*p}, v{T}
        v_mul_u32_u24 v{T+1}, 3641, v{T}
        v_lshrrev_b32 v{T+1}, 16, v{T+1}
        v_mul_u32_u24 v{T+2}, 18, v{T+1}
        v_sub_u32 v{T+2}, v{T}, v{T+2}
        v_and_b32 v{T+3}, 0x23, v{T+1}
        v_and_b32 v{T+4}, 12, v{T+1}
        v_lshl_or_b32 v{T+3}, v{T+4}, 1, v{T+3}
        v_and_b32 v{T+4}, 16, v{T+1}
        v_lshrrev_b32 v{T+4}, 2, v{T+4}
        v_or_b32 v{T+3}, v{T+3}, v{T+4}
        v_mul_u32_u24 v{7+p}, 9216, v{T+3}
        v_lshl_add_u32 v{7+p}, v{T+2}, 4, v{7+p}
        v_mul_u32_u24 v{10+p}, 3456, v{T+3}
        v_mul_u32_u24 v{T+4}, 43, v{T+2}
        v_lshrrev_b32 v{T+4}, 8, v{T+4}
        v_mul_u32_u24 v{T+5}, 6, v{T+4}
        v_sub_u32 v{T+5}, v{T+2}, v{T+5}
        v_min_u32 v{T+5}, 4, v{T+5}
        v_mul_u32_u24 v{T+4}, 1152, v{T+4}
        v_lshl_add_u32 v{T+4}, v{T+5}, 4, v{T+4}
        v_add_u32 v{10+p}, v{10+p}, v{T+4}""")
        if p:
            e(f"v_subrev_u32 v{7+p}, {1024*p}, v{7+p}\nv_subrev_u32 v{10+p}, {1024*p}, v{10+p}")

    def dma_setup(s):
        ps, q = divmod(s, 9)
        base, stride = [("s55", 589824), ("s54", 589824), ("s56", 221184)][ps]
        e(f"s_add_u32 s45, {base}, {q*stride}\ns_add_u32 m0, s46, {(s % RING)*STG}")

    def dma_piece(s, p):
        vo, srd = (7 + p, "s[12:15]") if s < 18 else (10 + p, "s[16:19]")
        if p == 2:
            e("s_mov_b32 exec_hi, 0")
        else:
            e("s_nop 0")
        e(f"buffer_load_dwordx4 v{vo}, {srd}, s45 offen offset:{1024*p} lds")
        if p == 2:
            e("s_mov_b32 exec_hi, -1")
        vm.issue(("dma", s))

    for s in range(LEAD):
        dma_setup(s)
        for p in range(npc):
            dma_piece(s, p)
    if hf == 0:
        e("s_cmp_lg_u32 s3, 0\ns_cbranch_scc1 g1_nononce")
        e("""s_or_b32 s52, s52, 1
        s_lshl_b32 s6, s4, 4
        v_mov_b32 v14, s52
        v_mov_b32 v15, 0
        s_mov_b64 exec, 1
        buffer_atomic_cmpswap v[14:15], off, s[40:43], s6 sc0 sc1
        s_mov_b64 exec, -1
        g1_nononce:""")
    e(f"""v_lshrrev_b32 v{T}, 3, v1
    v_and_b32 v{T+1}, 7, v1
    v_and_b32 v{T+2}, 3, v{T}
    s_and_b32 s6, s3, 1
    s_lshl_b32 s6, s6, 3
    v_or_b32 v{T+2}, s6, v{T+2}
    v_xor_b32 v{T+2}, v{T+2}, v{T+1}
    v_lshlrev_b32 v{T+2}, 4, v{T+2}
    v_lshl_add_u32 v{T+2}, v{T+1}, 8, v{T+2}
    v_lshrrev_b32 v{T}, 2, v{T}
    v_mul_u32_u24 v{T}, 10240, v{T}
    s_lshr_b32 s6, s3, 1
    s_mul_i32 s6, s6, 20480
    s_add_u32 s6, s6, {XST}
    v_add3_u32 v{WIN}, v{T}, v{T+2}, s6
    v_xor_b32 v{WIN+1}, 64, v{WIN}
    v_lshrrev_b32 v{T}, 4, v1
    v_and_b32 v{T+1}, 15, v1
    v_xor_b32 v{T+1}, v{T+1}, v{T}
    v_lshlrev_b32 v{T+1}, 4, v{T+1}
    v_lshl_add_u32 v{T+1}, v{T}, 8, v{T+1}
    s_mul_i32 s6, s44, 20480
    s_add_u32 s6, s6, {XST}
    v_add_u32 v{WIN+2}, s6, v{T+1}
    v_xor_b32 v{WIN+3}, 64, v{WIN+2}
    v_lshrrev_b32 v{T}, 2, v1
    v_mul_u32_u24 v{T}, 288, v{T}
    v_and_b32 v{T+1}, 3, v1
    v_lshl_add_u32 v3, v{T+1}, 3, v{T}
    v_add_u32 v4, {3*STG}, v3
    s_add_u32 s6, s57, {32 if hf == 0 else 224}
    v_add_u32 v5, s6, v{T}""")
    if hf == 0:
        e(f"v_and_b32 v{T+1}, 1, v1\nv_mul_u32_u24 v{T+1}, 96, v{T+1}\nv_add_u32 v5, v5, v{T+1}")
    e(f"""v_add_u32 v6, {3*STG}, v5
    s_mul_i32 s6, s44, 9216
    s_add_u32 s6, s6, {PARK + hf*5120}
    v_lshlrev_b32 v13, 2, v1
    v_add_u32 v13, s6, v13""")
    S, Q = WIN + 4, WIN + 6
    for u in range(9):
        vm.wait(("x", u))
        for d in range(4):
            for h in range(2):
                r = B0 + 36 * h + 4 * u + d
                first = (u == 0 and d == 0)
                e(f"v_dot2_f32_bf16 v{S+h}, v{r}, s50, {0 if first else f'v{S+h}'}")
                e(f"v_dot2_f32_bf16 v{Q+h}, v{r}, v{r}, {0 if first else f'v{Q+h}'}")
    e("s_nop 2")
    for ctl in ("quad_perm:[1,0,3,2]", "quad_perm:[2,3,0,1]", "row_half_mirror"):
        for r in range(4):
            e(f"v_add_f32_dpp v{S+r}, v{S+r}, v{S+r} {ctl} row_mask:0xf bank_mask:0xf")
    R = WIN + 8
    for h in range(2):
        e(f"v_mul_f32 v{S+h}, 0x3ae38e39, v{S+h}")
        e(f"v_mul_f32 v{Q+h}, 0x3ae38e39, v{Q+h}")
    for h in range(2):
        e(f"v_fma_f32 v{Q+h}, -v{S+h}, v{S+h}, v{Q+h}")
    for h in range(2):
        e(f"v_add_f32 v{Q+h}, 0x3727c5ac, v{Q+h}")
    for h in range(2):
        e(f"v_rsq_f32 v{R+4*h}, v{Q+h}")
    e("s_nop 0")
    for h in range(2):
        e(f"v_mul_f32 v{R+4*h+2}, v{S+h}, v{R+4*h}")

    def norm(h, u):
        a = B0 + 36 * h + 4 * u
        for d in range(4):
            e(f"v_lshlrev_b32 v{T+2*d}, 16, v{a+d}\nv_and_b32 v{T+2*d+1}, 0xffff0000, v{a+d}")
        for d in range(4):
            e(f"v_pk_fma_f32 v[{T+2*d}:{T+2*d+1}], v[{T+2*d}:{T+2*d+1}], v[{R+4*h}:{R+4*h+1}], v[{R+4*h+2}:{R+4*h+3}] op_sel_hi:[1,0,0] neg_lo:[0,0,1] neg_hi:[0,0,1]")
        for d in range(4):
            e(f"v_cvt_pk_bf16_f32 v{a+d}, v{T+2*d}, v{T+2*d+1}")

    def xw(h, u, u0):
        a = B0 + 36 * h + 4 * u
        e(f"ds_write_b128 v{WIN+h}, v[{a}:{a+3}] offset:{(u-u0)*2048}")

    def xr(t0, t1):
        for t in range(t0, t1):
            for j in range(2):
                d = X0 + 8 * t + 4 * j
                e(f"ds_read_b128 v[{d}:{d+3}], v{WIN+2+(t&1)} offset:{j*10240+(t-t0)*1024}")

    for u in range(4):
        for h in range(2):
            norm(h, u); xw(h, u, 0)
    for u in range(4, 7):
        for h in range(2):
            norm(h, u)
    e("s_waitcnt lgkmcnt(0)\ns_barrier")
    xr(0, 8)
    for u in range(7, 9):
        for h in range(2):
            norm(h, u)
    e("s_waitcnt lgkmcnt(0)\ns_barrier")
    for u in range(4, 9):
        for h in range(2):
            xw(h, u, 4)
    e("s_waitcnt lgkmcnt(0)\ns_barrier")
    xr(8, 18)
    e("s_waitcnt lgkmcnt(0)")
    st.mid(0)

    if hf == 0:
        P = [[(32*t, 0, B0 + 8*t, 'N') for t in range(5)],
             [(32*t, 0, B1 + 8*t, 'T') for t in range(4)],
             [(0, 0, B0, 'T'), (40, 0, B0+8, 'T'), (96, 0, B0+16, 'T'), (136, 0, B0+24, 'T'), (0, 1, B0+32, 'T')]]
        z2t, z1t = list(range(5)), list(range(4))
        BZ2, BZ1 = B0, B1
    else:
        P = [[(32*(5+t), 0, B1 + 8*t, 'N') for t in range(4)],
             [(32*(4+t), 0, B0 + 8*t, 'T') for t in range(5)],
             [(192, 0, B1, 'N'), (232, 0, B1+8, 'N'), (0, 1, B1+16, 'N')]]
        z2t, z1t = list(range(5, 9)), list(range(4, 9))
        BZ2, BZ1 = B1, B0
    frags = [(s, kk, ti) for s in range(27) for kk in range(2) for ti in range(len(P[s // 9]))]
    NF = len(frags)
    cur = dict(stage=-1)
    timed = {}

    def rd(n):
        s, kk, ti = frags[n]
        if kk == 0 and ti == 0:
            vm.wait(("dma", s))
            e("s_barrier")
            cur['stage'] = s
            if 'bw' in info and hf == 1 and 'bvis' not in info and not lg.pending('bw'):
                info['bvis'] = s
            if s == 18:
                e("v_add_u32 v3, s57, v3\nv_add_u32 v4, s57, v4")
            if s + LEAD < 27:
                for p in range(npc):
                    def f(p=p, s=s):
                        if p == 0:
                            dma_setup(s + LEAD)
                        dma_piece(s + LEAD, p)
                    timed.setdefault(max(0, n - 3 + 1 + 2 * p), []).append(f)
        col, kind, _, _ = P[s // 9][ti]
        b = s % RING
        a = (3 if kind == 0 else 5) + (1 if b >= 3 else 0)
        o = (b % 3) * STG + kk * 32 * 288 + col
        w = WIN + 4 * (n % 4)
        e(f"ds_read_b64_tr_b16 v[{w}:{w+1}], v{a} offset:{o}")
        e(f"ds_read_b64_tr_b16 v[{w+2}:{w+3}], v{a} offset:{o+16*288}")
        lg.issue(None); lg.issue(("f", n))

    fill = []

    def gelu4(acc):
        n = len(acc)
        L = []
        L += [f"v_fmaak_f32 v{T+i}, v{a}, v{a}, 0x41b2e92f" for i, a in enumerate(acc)]
        L += [f"v_mul_f32 v{T+4+i}, s47, v{a}" for i, a in enumerate(acc)]
        L += [f"v_mul_f32 v{T+i}, v{T+i}, v{T+4+i}" for i in range(n)]
        L += [f"v_exp_f32 v{T+i}, v{T+i}" for i in range(n)]
        L += [f"v_add_f32 v{T+i}, 1.0, v{T+i}" for i in range(n)]
        L += [f"v_rcp_f32 v{T+i}, v{T+i}" for i in range(n)]
        L += [f"v_mul_f32 v{T+4+i}, v{a}, v{T+i}" for i, a in enumerate(acc)]
        return L

    def dsop(txt, tag=None):
        def f():
            e(txt); lg.issue(tag)
        return f

    def vmop(txt, tag=None):
        def f():
            e(txt); vm.issue(tag)
        return f

    def z2fill():
        L = []
        nt = len(z2t)
        for j in range(2):
            for rp in range(2):
                for p0 in range(0, nt, 2):
                    tl = [t for t in (p0, p0 + 1) if t < nt]
                    acc = [BZ2 + 8*t + 4*j + 2*rp + r for t in tl for r in range(2)]
                    L += gelu4(acc)
                    for i, t in enumerate(tl):
                        L.append(f"v_cvt_pk_bf16_f32 v{T+2*i}, v{T+4+2*i}, v{T+5+2*i}")
                    for r in range(2):
                        sS = BZ2 + 4*j + 2*rp + r
                        sQ = sS + 8
                        if p0 == 0:
                            L += [f"v_add_f32 v{sS}, v{T+4+r}, v{T+6+r}", f"v_mul_f32 v{sQ}, v{T+4+r}, v{T+4+r}"]
                        else:
                            L += [f"v_add_f32 v{sS}, v{sS}, v{T+4+r}", f"v_fmac_f32 v{sQ}, v{T+4+r}, v{T+4+r}"]
                    for i, t in enumerate(tl):
                        L.append(dsop(f"ds_write_b32 v13, v{T+2*i} offset:{(t*4 + 2*j + rp)*256}"))
                    if len(tl) == 2:
                        for r in range(2):
                            sS = BZ2 + 4*j + 2*rp + r
                            sQ = sS + 8
                            if p0:
                                L.append(f"v_add_f32 v{sS}, v{sS}, v{T+6+r}")
                            L.append(f"v_fmac_f32 v{sQ}, v{T+6+r}, v{T+6+r}")
        L.append("s_nop 1")
        for bm, src in (("0x3", 0), ("0xc", 4)):
            for q in range(2):
                for r in range(4):
                    a = BZ2 + 8*q + r
                    L.append(f"v_add_f32_dpp v{a}, v{a+src}, v{a+src} row_mirror row_mask:0xf bank_mask:{bm}")
        for bm, src in (("0x5", 0), ("0xa", 2)):
            for q in range(2):
                for r in range(2):
                    a = BZ2 + 8*q + r
                    L.append(f"v_add_f32_dpp v{a}, v{a+src}, v{a+src} row_half_mirror row_mask:0xf bank_mask:{bm}")
        for ctl in ("quad_perm:[1,0,3,2]", "quad_perm:[2,3,0,1]"):
            for q in range(2):
                for r in range(2):
                    a = BZ2 + 8*q + r
                    L.append(f"v_add_f32_dpp v{a}, v{a}, v{a} {ctl} row_mask:0xf bank_mask:0xf")
        L.append("s_mov_b32 s60, 0xaaaaaaaa\ns_mov_b32 s61, 0xaaaaaaaa")
        L.append(f"s_lshl_b32 s6, s44, 9\ns_add_u32 s6, s6, {SCR+256}")
        L.append(f"v_lshlrev_b32 v{T+7}, 3, v1")
        L.append(f"v_add_u32 v{T+7}, s6, v{T+7}")
        if hf == 1:
            L.append(f"v_cndmask_b32 v{T}, v{BZ2}, v{BZ2+1}, s[60:61]")
            L.append(f"v_cndmask_b32 v{T+1}, v{BZ2+8}, v{BZ2+9}, s[60:61]")
            def f():
                e(f"ds_write_b64 v{T+7}, v[{T}:{T+1}]"); lg.issue('bw'); info['bw'] = True
            L.append(f)
        else:
            L.append(f"v_cndmask_b32 v{T}, v{BZ2}, v{BZ2+1}, s[60:61]")
            L.append(f"v_cndmask_b32 v{T+2}, v{BZ2+8}, v{BZ2+9}, s[60:61]")
            L.append(("hold", info['bvis']))
            L.append(dsop(f"ds_read_b64 v[{T+4}:{T+5}], v{T+7}", 'br'))
            L.append(f"v_lshrrev_b32 v{T+6}, 2, v1")
            L.append(f"v_and_b32 v{T+7}, 1, v1")
            L.append(f"v_lshl_or_b32 v{T+6}, v{T+6}, 1, v{T+7}")
            L.append(f"v_lshlrev_b32 v{T+6}, 4, v{T+6}")
            L.append(f"v_mov_b32 v{T+1}, s48")
            L.append(f"v_mov_b32 v{T+3}, s48")
            L.append("s_lshl_b32 s6, s58, 4\ns_add_u32 s6, s6, s5\ns_lshl_b32 s6, s6, 9")
            L.append(("skip", 4))
            L.append(lambda: lg.wait('br'))
            L.append(f"v_add_f32 v{T}, v{T}, v{T+4}")
            L.append(f"v_add_f32 v{T+2}, v{T+2}, v{T+5}")
            L.append(vmop(f"s_mov_b32 exec_lo, 0x33333333\ns_mov_b32 exec_hi, 0x33333333\n"
                          f"buffer_store_dwordx4 v[{T}:{T+3}], v{T+6}, s[36:39], s6 offen sc1\ns_mov_b64 exec, -1\ns_nop 0"))
        return L

    def z1fill():
        L = []
        L.append(f"s_lshl_b32 s6, s4, 4\ns_add_u32 s6, s6, s5\ns_lshl_b32 s6, s6, 2\ns_add_u32 s6, s6, s44\n"
                 f"s_mul_i32 s6, s6, 9216\ns_add_u32 s62, s6, {z1t[0]*1024}\ns_add_u32 s63, s62, 4096")
        for i, t in enumerate(z1t):
            b = BZ1 + 8 * i
            for j in range(2):
                L += gelu4([b + 4*j + r for r in range(4)])
                L.append(f"v_cvt_pk_bf16_f32 v{b+2*j}, v{T+4}, v{T+5}")
                L.append(f"v_cvt_pk_bf16_f32 v{b+2*j+1}, v{T+6}, v{T+7}")
            L.append(vmop(f"buffer_store_dwordx4 v[{b}:{b+3}], v2, s[24:27], {'s62' if i < 4 else 's63'} offen offset:{(i%4)*1024}"))
        return L

    skip = [0]

    def pump(n):
        while n > 0 and fill:
            if skip[0] > 0:
                skip[0] -= 1
                return
            it = fill[0]
            if isinstance(it, tuple):
                if it[0] == "hold":
                    if cur['stage'] < it[1]:
                        return
                    fill.pop(0)
                    continue
                skip[0] = it[1]
                fill.pop(0)
                continue
            fill.pop(0)
            it() if callable(it) else e(it)
            n -= 1

    def flush():
        skip[0] = 0
        while fill:
            assert not (isinstance(fill[0], tuple) and fill[0][0] == "hold" and cur['stage'] < fill[0][1])
            skip[0] = 0
            pump(1000)

    GS = X0

    def gather():
        e("s_lshl_b32 s6, s58, 13\ns_add_u32 s7, s6, 4096")
        for q in range(8):
            e(f"buffer_load_dwordx4 v[{GS+4*q}:{GS+4*q+3}], v2, s[36:39], s{6+q//4} offen offset:{(q%4)*1024} sc1")
            vm.issue('gs')

    for n in range(3):
        rd(n)
    for n in range(NF):
        s, kk, ti = frags[n]
        ps = s // 9
        if kk == 0 and ti == 0 and s % 9 == 0 and ps > 0:
            flush()
            if not nogelu:
                fill += [("skip", 4)] + (z2fill() if ps == 1 else z1fill())
        if kk == 0 and ti == 0 and s == 5:
            if hf == 0:
                e(f"""s_cmp_lg_u32 s3, 0
                s_cbranch_scc1 g1_nn2
                v_readfirstlane_b32 s6, v14
                s_cmp_eq_u32 s6, 0
                s_cselect_b32 s6, s52, s6
                v_mov_b32 v14, s6
                v_mov_b32 v15, {SCR}
                ds_write_b32 v15, v14
                s_waitcnt lgkmcnt(0)
                g1_nn2:""")
        if kk == 0 and ti == 0 and s == 7:
            e(f"v_mov_b32 v15, {SCR}\nds_read_b32 v14, v15"); lg.issue('nonce')
        if kk == 0 and ti == 0 and s == 8:
            lg.wait('nonce')
            e("v_readfirstlane_b32 s48, v14")
        if kk == 0 and ti == 0 and s == 25:
            gather()
        lg.wait(("f", n))
        _, _, acc, ori = P[ps][ti]
        t = (s % 9) * 2 + kk
        w = WIN + 4 * (n % 4)
        for j in range(2):
            x = X0 + 8 * t + 4 * j
            c = acc + 4 * j
            A, B = (x, w) if ori == 'N' else (w, x)
            src = "0" if t == 0 else f"v[{c}:{c+3}]"
            e(f"v_mfma_f32_16x16x32_bf16 v[{c}:{c+3}], v[{A}:{A+3}], v[{B}:{B+3}], {src}")
            if j == 0 and n + 3 < NF:
                pass
            if ps > 0:
                pump(rate[ps - 1])
        if n + 3 < NF:
            rd(n + 3) if False else None
        for f in timed.pop(n, []):
            f()
        if n + 3 < NF:
            rd(n + 3)
    assert not timed, timed.keys()
    st.mid(1)
    flush()
    PZ = X0 + 48
    nt = len(z2t)
    for t in range(nt):
        for q in range(2):
            e(f"ds_read2st64_b32 v[{PZ+4*t+2*q}:{PZ+4*t+2*q+1}], v13 offset0:{t*4+2*q} offset1:{t*4+2*q+1}")
    e("s_nop 4")
    if hf == 0:
        e(f"v_mul_u32_u24 v{T+7}, 12, v1")
        e(f"s_lshl_b32 s6, s5, 7\ns_add_u32 s6, s6, s58\ns_mul_i32 s62, s6, 1536\ns_add_u32 s63, s62, {64*1536}")
        e(f"s_mul_i32 s64, s6, 2688\ns_add_u32 s65, s64, {64*2688}")
        e("s_mov_b32 s60, -1\ns_mov_b32 s61, 0")
        TT = B0 + 32
        for j in range(2):
            for hh in range(2):
                e(f"v_cvt_pk_bf16_f32 v{T+2*j+hh}, v{TT+4*j+2*hh}, v{TT+4*j+2*hh+1}")
        for ti in range(4):
            for j in range(2):
                c = B0 + 8 * ti + 4 * j
                e(f"v_cvt_pk_bf16_f32 v{c}, v{c}, v{c+1}\nv_cvt_pk_bf16_f32 v{c+1}, v{c+2}, v{c+3}")
                if ti >= 2:
                    e(f"v_mov_b32 v{c+2}, v{T+2*j+(ti&1)}")
                else:
                    e(f"v_mov_b32 v{c+2}, 0\nv_cndmask_b32 v{c+3}, 0, v{T+2*j+ti}, s[60:61]")
        for j in range(2):
            for ti in range(2):
                c = B0 + 8 * ti + 4 * j
                e(f"v_permlane16_swap_b32 v{c+2}, v{c+3}")
        for ti in (2, 3, 0, 1):
            for j in range(2):
                c = B0 + 8 * ti + 4 * j
                srd = "s[28:31]" if ti < 2 else "s[32:35]"
                e(f"buffer_store_dwordx3 v[{c}:{c+2}], v{T+7}, {srd}, s{62+ti} offen offset:{768*j}")
                vm.issue()
    else:
        e(f"s_lshl_b32 s6, s5, 7\ns_add_u32 s6, s6, s58\ns_mul_i32 s64, s6, 2688\ns_add_u32 s65, s64, {64*2688}")
        e(f"""v_bfe_u32 v{T+7}, v1, 1, 1
        v_mul_u32_u24 v{T+7}, {64*2688}, v{T+7}
        v_and_b32 v{T+6}, 1, v1
        v_lshl_add_u32 v{T+7}, v{T+6}, 6, v{T+7}
        v_lshrrev_b32 v{T+6}, 4, v1
        v_lshl_add_u32 v{T+7}, v{T+6}, 4, v{T+7}""")
        for ti in range(3):
            c = B1 + 8 * ti
            for q in range(4):
                e(f"v_cvt_pk_bf16_f32 v{c+q}, v{c+2*q}, v{c+2*q+1}")
        for ti in range(2):
            c = B1 + 8 * ti
            e(f"buffer_store_dwordx4 v[{c}:{c+3}], v2, s[32:35], s{64+ti} offen offset:1536")
            vm.issue()
        c = B1 + 16
        e("s_mov_b32 exec_lo, 0x000f000f\ns_mov_b32 exec_hi, 0x000f000f")
        e(f"buffer_store_dwordx4 v[{c}:{c+3}], v{T+7}, s[32:35], s64 offen offset:2560")
        vm.issue()
        e("s_mov_b64 exec, -1")
    vm.wait('gs')
    e("s_mov_b32 s66, 4096")
    L1, L2 = f"g1_chk{hf}", f"g1_ok{hf}"
    e(f"{L1}:")
    tags = [GS + 2 * i + 1 for i in range(16)]
    for op, d in (("min", T), ("max", T + 1)):
        e(f"v_{op}3_u32 v{d}, v{tags[0]}, v{tags[1]}, v{tags[2]}")
        for i in range(3, 15, 2):
            e(f"v_{op}3_u32 v{d}, v{d}, v{tags[i]}, v{tags[i+1]}")
        e(f"v_{op}_u32 v{d}, v{d}, v{tags[15]}")
    e(f"""v_cmp_ne_u32 vcc, s48, v{T}
    v_cmp_ne_u32 s[60:61], s48, v{T+1}
    s_or_b64 vcc, vcc, s[60:61]
    s_cbranch_vccz {L2}
    s_sub_u32 s66, s66, 1
    s_cmp_eq_u32 s66, 0
    s_cbranch_scc1 {L2}""")
    gather()
    e(f"s_waitcnt vmcnt(0)\ns_branch {L1}\n{L2}:")
    for o in (0, 2):
        e(f"v_add3_u32 v{T}, v{T}, v{T}, v{T}") if False else None
    for stp in (16, 8, 4):
        for b in range(0, stp, 4):
            for o in (0, 2):
                e(f"v_add_f32 v{GS+b+o}, v{GS+b+o}, v{GS+b+stp+o}")
    e(f"v_mov_b32 v{GS+1}, v{GS}\nv_mov_b32 v{GS+3}, v{GS+2}")
    e(f"v_and_b32 v{T+2}, 31, v1\nv_lshlrev_b32 v{T+2}, 3, v{T+2}")
    e(f"v_permlane32_swap_b32 v{GS}, v{GS+1}\nv_permlane32_swap_b32 v{GS+2}, v{GS+3}")
    e(f"s_lshl_b32 s6, s3, 8\ns_add_u32 s6, s6, {SCR+2304}")
    e(f"""v_add_f32 v{GS}, v{GS}, v{GS+1}
    v_add_f32 v{GS+2}, v{GS+2}, v{GS+3}
    v_mul_f32 v{GS}, 0x39e38e39, v{GS}
    v_mul_f32 v{GS+2}, 0x39e38e39, v{GS+2}
    v_fma_f32 v{GS+2}, -v{GS}, v{GS}, v{GS+2}
    v_add_f32 v{GS+2}, 0x3727c5ac, v{GS+2}
    v_rsq_f32 v{GS+2}, v{GS+2}
    v_add_u32 v{T+2}, s6, v{T+2}
    v_mul_f32 v{GS+3}, v{GS}, v{GS+2}
    v_lshrrev_b32 v{T+3}, 4, v1
    v_lshlrev_b32 v{T+3}, 6, v{T+3}
    v_add_u32 v{T+3}, s6, v{T+3}
    ds_write_b64 v{T+2}, v[{GS+2}:{GS+3}]""")
    RN = GS + 8
    for q in range(4):
        e(f"ds_read_b128 v[{RN+4*q}:{RN+4*q+3}], v{T+3} offset:{16*q}")
    e(f"s_lshl_b32 s6, s5, 6\ns_add_u32 s6, s6, s58\ns_mul_i32 s6, s6, 9216\ns_add_u32 s62, s6, {z2t[0]*1024}\ns_add_u32 s63, s62, 4096")
    e("s_waitcnt lgkmcnt(0)")
    for t in range(nt):
        p = PZ + 4 * t
        for q in range(4):
            e(f"v_lshlrev_b32 v{T+2*q}, 16, v{p+q}\nv_and_b32 v{T+2*q+1}, 0xffff0000, v{p+q}")
        for q in range(8):
            e(f"v_fma_f32 v{T+q}, v{T+q}, v{RN+2*q}, -v{RN+2*q+1}")
        for q in range(4):
            e(f"v_cvt_pk_bf16_f32 v{p+q}, v{T+2*q}, v{T+2*q+1}")
        e(f"buffer_store_dwordx4 v[{p}:{p+3}], v2, s[20:23], {'s62' if t < 4 else 's63'} offen offset:{(t%4)*1024}")
    if stamp and hf == 0:
        e("s_waitcnt vmcnt(0)\ns_cmp_lg_u32 s3, 0\ns_cbranch_scc1 g1_end")
        st.end(16)
    e("s_endpgm")


if __name__ == "__main__":
    open("t_g1.s", "w").write(build([gen_g1(stamp=True)]))
```

```python
from common import *

BUF = 34816


def gen_g2(stamp=False, kidx=2, rot=False, zoff=OFF_Z2N, z1it=None, name='g2_kernel', noreads=False, nodma=False, halfreads=False):
    k = Kern("g2_kernel", 256, 512, 4 * BUF, 212, sgpr=102)
    st = Stamps(k, stamp, kidx)
    e = k.e
    e("s_cmp_ge_u32 s2, 256\ns_cbranch_scc1 g2_end")
    st.begin()
    k.srd(8, "wsp"); k.srd(12, "ws"); k.srd(16, "ws"); k.srd(20, "ws"); k.srd(24, "bsp")
    e("v_lshrrev_b32 v1, 6, v0\nv_and_b32 v2, 63, v0")
    e("s_nop 0\nv_readfirstlane_b32 s3, v1")
    e("""s_and_b32 s4, s2, 1
    s_lshl_b32 s4, s4, 3
    s_bfe_u32 s6, s2, 0x30003
    s_add_u32 s4, s4, s6
    s_bfe_u32 s5, s2, 0x20001
    s_lshl_b32 s5, s5, 2
    s_lshr_b32 s6, s2, 6
    s_add_u32 s5, s5, s6""")
    e("s_cmp_ge_u32 s3, 4\ns_cbranch_scc1 g2_prod")
    ACC = 16
    S0 = 88
    S1 = 132
    Z1 = 176
    e("s_setprio 1")
    e("s_waitcnt lgkmcnt(0)")
    k.srd_fin(16, "ws", size=SZ_Z, off=OFF_Z1)
    k.srd_fin(20, "ws", size=SZ_Z, off=OFF_H)
    k.srd_fin(24, "bsp")
    e("""s_lshl_b32 s6, s4, 4
    s_add_u32 s6, s6, s5
    s_lshl_b32 s6, s6, 2
    s_add_u32 s6, s6, s3
    s_mul_i32 s6, s6, 9216
    v_lshlrev_b32 v3, 4, v2
    s_add_u32 s7, s6, 4096
    s_add_u32 s28, s6, 8192""")
    def z1loads():
        for ft in range(9):
            so = ["s6", "s7", "s28"][ft // 4]
            e(f"buffer_load_dwordx4 v[{Z1+4*ft}:{Z1+4*ft+3}], v3, s[16:19], {so} offen offset:{(ft%4)*1024}")
    if z1it is None:
        z1loads()
    e("""v_and_b32 v4, 15, v2
    v_lshrrev_b32 v5, 2, v4
    v_lshlrev_b32 v5, 3, v5
    v_and_b32 v6, 3, v4
    v_add_u32 v5, v5, v6
    v_lshlrev_b32 v5, 1, v5
    s_lshl_b32 s29, s4, 2
    s_add_u32 s29, s29, s3
    s_lshl_b32 s30, s29, 6""")
    e("buffer_load_ushort v14, v5, s[24:27], s30 offen")
    e("buffer_load_ushort v15, v5, s[24:27], s30 offen offset:8")
    e(f"""v_lshrrev_b32 v8, 2, v4
    v_lshlrev_b32 v9, 1, v8
    v_bfe_u32 v10, v4, 1, 1
    v_or_b32 v9, v9, v10
    v_lshrrev_b32 v10, 4, v2
    v_xor_b32 v9, v9, v10
    v_lshlrev_b32 v9, 4, v9
    v_lshlrev_b32 v8, 12, v8
    v_add_u32 v8, v8, v9
    v_and_b32 v9, 3, v4
    v_lshlrev_b32 v9, 7, v9
    v_add_u32 v8, v8, v9
    s_lshl_b32 s31, s3, 10
    s_add_u32 s31, s31, 18432
    v_add_u32 v8, s31, v8
    v_xor_b32 v9, 64, v8
    v_add_u32 v10, {2*BUF}, v8
    v_add_u32 v11, {2*BUF}, v9
    v_mov_b32 v6, v3
    v_add_u32 v7, {2*BUF}, v3""")
    for r in range(72):
        e(f"v_mov_b32 v{ACC+r}, 0")

    def reads(S, buf, kap):
        a = "v6" if buf < 2 else "v7"
        b = f"v{8 + kap + (0 if buf < 2 else 2)}"
        o = (buf & 1) * BUF
        L = [f"ds_read_b128 v[{S+4*j}:{S+4*j+3}], {b} offset:{o+512*j}" for j in range(2)]
        L += [f"ds_read_b128 v[{S+8+4*ft}:{S+8+4*ft+3}], {a} offset:{o+(kap*9+ft)*1024}" for ft in range(9)]
        return L

    def phase(S, R):
        m = []
        for ft in range(9):
            for j in range(2):
                c = ACC + 8 * ft + 4 * j
                m.append(f"v_mfma_f32_16x16x32_bf16 v[{c}:{c+3}], v[{S+8+4*ft}:{S+8+4*ft+3}], v[{S+4*j}:{S+4*j+3}], v[{c}:{c+3}]")
        if noreads:
            R = []
        if halfreads:
            R = R[:6]
        for i, x in enumerate(m):
            e(x)
            if i < len(R):
                e(R[i])

    e("s_barrier")
    st.mid(0)
    for x in reads(S0, 0, 0) + (reads(S1, 0, 1) if (noreads or halfreads) else []):
        e(x)
    e("s_mov_b32 s32, 8")
    e("g2_cloop:")
    if z1it is not None:
        e(f"s_cmp_lg_u32 s32, {z1it}\ns_cbranch_scc1 g2_noz1")
        z1loads()
        e("g2_noz1:")
    for b in range(4):
        e("s_waitcnt lgkmcnt(0)")
        phase(S0, reads(S1, b, 1))
        e("s_waitcnt lgkmcnt(0)\ns_barrier")
        phase(S1, reads(S0, (b + 1) % 4, 0))
    e("s_sub_u32 s32, s32, 1\ns_cmp_lg_u32 s32, 0\ns_cbranch_scc1 g2_cloop")
    st.mid(1)
    e("s_waitcnt vmcnt(0) lgkmcnt(0)")
    e("v_lshlrev_b32 v14, 16, v14\nv_lshlrev_b32 v15, 16, v15")
    e("""s_lshl_b32 s6, s29, 4
    s_add_u32 s6, s6, s5
    s_mul_i32 s6, s6, 9216
    s_add_u32 s7, s6, 4096
    s_add_u32 s28, s6, 8192
    s_nop 4""")
    T = S0
    O = S1
    for ft in range(9):
        for j in range(2):
            c = ACC + 8 * ft + 4 * j
            z = Z1 + 4 * ft + 2 * j
            t = T + 4 * ((2 * ft + j) % 4)
            e(f"v_lshlrev_b32 v{t}, 16, v{z}\nv_and_b32 v{t+1}, 0xffff0000, v{z}")
            e(f"v_lshlrev_b32 v{t+2}, 16, v{z+1}\nv_and_b32 v{t+3}, 0xffff0000, v{z+1}")
            for r in range(4):
                e(f"v_add_f32 v{c+r}, v{c+r}, v{14+j}")
            for r in range(4):
                e(f"v_mul_f32 v{c+r}, v{c+r}, v{t+r}")
            if ft < 8:
                d = O + 4 * (2 * (ft // 2) + j) + 2 * (ft & 1)
            else:
                d = O + 32 + 2 * j
            e(f"v_cvt_pk_bf16_f32 v{d}, v{c}, v{c+1}\nv_cvt_pk_bf16_f32 v{d+1}, v{c+2}, v{c+3}")
        if ft & 1 or ft == 8:
            sl = [2 * (ft // 2), 2 * (ft // 2) + 1] if ft < 8 else [8]
            for s in sl:
                so = ["s6", "s7", "s28"][s // 4]
                e(f"buffer_store_dwordx4 v[{O+4*s}:{O+4*s+3}], v3, s[20:23], {so} offen offset:{(s%4)*1024}")
    if stamp:
        e("s_waitcnt vmcnt(0)\ns_cmp_lg_u32 s3, 0\ns_cbranch_scc1 g2_end")
        st.end(16)
    e("s_endpgm")
    e("g2_prod:")
    e("s_sub_u32 s3, s3, 4")
    e("s_waitcnt lgkmcnt(0)")
    k.srd_fin(8, "wsp")
    k.srd_fin(12, "ws", size=SZ_Z, off=zoff)
    e("""v_lshrrev_b32 v3, 3, v2
    v_lshlrev_b32 v3, 12, v3
    v_bfe_u32 v4, v2, 4, 1
    s_lshl_b32 s6, s3, 1
    v_or_b32 v4, s6, v4
    v_and_b32 v5, 7, v2
    v_xor_b32 v4, v4, v5
    v_lshlrev_b32 v4, 4, v4
    v_add_u32 v3, v3, v4
    s_lshl_b32 s6, s4, 4
    s_add_u32 s6, s6, s3
    s_lshl_b32 s6, s6, 15
    v_add_u32 v4, s6, v3""")
    for cw in range(1, 4):
        e(f"v_add_u32 v{4+cw}, {cw*(131072-1024)}, v4")
    e("""s_mul_i32 s7, s3, 5
    s_cmp_eq_u32 s3, 3
    s_cselect_b32 s6, 1, 0
    s_sub_u32 s7, s7, s6
    s_lshl_b32 s7, s7, 10
    v_lshlrev_b32 v8, 4, v2
    v_add_u32 v8, s7, v8""")
    e(f"s_mul_i32 s6, s5, {64*9216}\nv_add_u32 v8, s6, v8\nv_add_u32 v9, 4096, v8")
    e(f"s_mov_b32 s33, s7\ns_lshl_b32 s34, s3, 12\ns_add_u32 s34, s34, 18432")
    if rot:
        e("""s_and_b32 s35, s4, 7
        s_and_b32 s6, s5, 3
        s_lshl_b32 s6, s6, 1
        s_add_u32 s35, s35, s6
        s_lshl_b32 s35, s35, 2
        s_and_b32 s35, s35, 31""")
    else:
        e("s_mov_b32 s35, 0")
    e("s_mov_b32 s36, 0")

    def issue(five):
        e(f"s_lshl_b32 s37, s35, 7\ns_mul_i32 s38, s35, 18432")
        e("s_add_u32 m0, s36, s34\ns_nop 0")
        for cw in range(4):
            e(f"buffer_load_dwordx4 v{4+cw}, s[8:11], s37 offen offset:{cw*1024} lds")
        e("s_add_u32 m0, s36, s33\ns_nop 0")
        for p in range(4):
            e(f"buffer_load_dwordx4 v8, s[12:15], s38 offen offset:{p*1024} lds")
        if five:
            e("s_add_u32 m0, m0, 4096\ns_nop 0")
            e(f"buffer_load_dwordx4 v9, s[12:15], s38 offen lds")
        e(f"s_add_u32 s35, s35, 1\ns_and_b32 s35, s35, 31")
        e(f"s_add_u32 s36, s36, {BUF}\ns_cmp_eq_u32 s36, {4*BUF}\ns_cselect_b32 s36, 0, s36")

    e("s_cmp_ge_u32 s3, 2\ns_cbranch_scc1 g2_prod4")
    for five in (True, False):
        c = 9 if five else 8
        if not five:
            e("g2_prod4:")
        for _ in range(3):
            issue(five)
        e("s_mov_b32 s32, 29")
        lab = f"g2_ploop{c}"
        e(f"{lab}:")
        e(f"s_waitcnt vmcnt({2*c})\ns_barrier")
        if not nodma:
            issue(five)
        e(f"s_sub_u32 s32, s32, 1\ns_cmp_lg_u32 s32, 0\ns_cbranch_scc1 {lab}")
        e(f"s_waitcnt vmcnt({2*c})\ns_barrier")
        e(f"s_waitcnt vmcnt({c})\ns_barrier")
        e(f"s_waitcnt vmcnt(0)\ns_barrier")
        e("s_barrier")
        e("s_endpgm")
    e("g2_end:\ns_endpgm")
    return k


if __name__ == "__main__":
    import sys
    open("t_g2.s", "w").write(build([gen_g2(stamp=True)]))
    open("t_g2b.s", "w").write(build([gen_g2(stamp=True, z1it=3)]))
    open("t_g2c.s", "w").write(build([gen_g2(stamp=True, z1it=3, noreads=True)]))
    open("t_g2d.s", "w").write(build([gen_g2(stamp=True, z1it=3, nodma=True)]))
    open("t_g2e.s", "w").write(build([gen_g2(stamp=True, z1it=3, nodma=True, noreads=True)]))
    open("t_g2f.s", "w").write(build([gen_g2(stamp=True, z1it=3, halfreads=True)]))
```

```python
from common import *

DEPTH = 6


def gen_g3(stamp=False, kidx=3):
    k = Kern("g3_kernel", 256, 256, 4 * 15 * 1024, 244, agpr=80, sgpr=102)
    st = Stamps(k, stamp, kidx)
    e = k.e
    e("s_cmp_ge_u32 s2, 256\ns_cbranch_scc1 g3_end")
    st.begin()
    k.srd(8, "ws"); k.srd(24, "x"); k.srd(28, "out")
    e("v_lshrrev_b32 v1, 6, v0\nv_and_b32 v2, 63, v0")
    e("s_nop 0\nv_readfirstlane_b32 s3, v1")
    e("""s_and_b32 s4, s2, 1
    s_lshl_b32 s4, s4, 4
    s_bfe_u32 s6, s2, 0x10001
    s_lshl_b32 s6, s6, 3
    s_add_u32 s4, s4, s6
    s_bfe_u32 s6, s2, 0x30003
    s_add_u32 s4, s4, s6
    s_bfe_u32 s5, s2, 0x10002
    s_lshl_b32 s5, s5, 2
    s_lshr_b32 s6, s2, 6
    s_add_u32 s5, s5, s6""")
    e("""v_lshlrev_b32 v3, 4, v2
    v_lshrrev_b32 v4, 4, v2
    v_lshlrev_b32 v4, 3, v4
    v_and_b32 v5, 7, v2
    v_add_u32 v4, v4, v5
    v_lshlrev_b32 v4, 4, v4
    v_add_u32 v4, 4096, v4""")
    e(f"""s_lshl_b32 s6, s4, 5
    s_lshl_b32 s7, s3, 2
    s_add_u32 s6, s6, s7
    s_mul_i32 s6, s6, 9216
    v_add_u32 v5, s6, v3
    v_add_u32 v6, {16*9216}, v5""")
    e(f"""s_lshl_b32 s6, s4, 6
    s_lshl_b32 s7, s3, 3
    s_add_u32 s6, s6, s7
    s_lshl_b32 s6, s6, 10
    v_add_u32 v7, s6, v3
    v_add_u32 v8, {32*1024}, v7""")
    e(f"""s_lshl_b32 s6, s4, 3
    s_lshl_b32 s7, s3, 1
    s_add_u32 s6, s6, s7
    s_lshl_b32 s6, s6, 10
    v_add_u32 v9, s6, v3
    v_add_u32 v10, 4096, v9""")
    e(f"""s_lshl_b32 s6, s5, 2
    s_add_u32 s6, s6, s3
    s_mul_i32 s32, s6, {23*4608}""")
    e("""v_and_b32 v11, 15, v2
    v_lshrrev_b32 v12, 2, v11
    v_lshlrev_b32 v12, 3, v12
    v_and_b32 v11, 3, v11
    v_add_u32 v11, v11, v12
    s_lshl_b32 s6, s4, 6
    s_lshr_b32 s7, s3, 1
    s_lshl_b32 s7, s7, 5
    s_add_u32 s6, s6, s7
    s_and_b32 s7, s3, 1
    s_lshl_b32 s7, s7, 2
    s_add_u32 s6, s6, s7
    v_add_u32 v11, s6, v11
    v_mul_u32_u24 v11, 1152, v11
    s_mul_i32 s6, s5, 144
    v_add_u32 v11, s6, v11
    v_lshrrev_b32 v12, 4, v2
    v_lshlrev_b32 v13, 3, v12
    v_add_u32 v13, v13, v11
    v_lshlrev_b32 v12, 4, v12
    v_add_u32 v12, v12, v11""")
    e("s_waitcnt lgkmcnt(0)")
    for s in (12, 16, 20):
        e(f"s_mov_b64 s[{s}:{s+1}], s[8:9]")
    k.srd_fin(8, "ws", size=SZ_Z, off=OFF_H)
    k.srd_fin(12, "ws", size=SZ_W3, off=OFF_W3)
    k.srd_fin(16, "ws", size=SZ_OM, off=OFF_OM)
    k.srd_fin(20, "ws", size=SZ_OT, off=OFF_OT)
    k.srd_fin(24, "x"); k.srd_fin(28, "out")
    BUF0 = 28
    XR = 16

    chunks = [("ot",)] + [("reg", a, p) for a in range(4) for p in range(4)] + [("sp", u) for u in range(2)] + [("om", u) for u in range(4)]
    sreg = [40]

    def soff(val):
        if val == 0:
            return "0"
        r = sreg[0]
        sreg[0] = 40 + (sreg[0] - 40 + 1) % 16
        e(f"s_mov_b32 s{r}, {val}")
        return f"s{r}"

    def loads(c):
        b = BUF0 + 36 * (c % DEPTH)
        ch = chunks[c]
        if ch[0] == "ot":
            for G in range(2):
                for j in range(2):
                    d = b + 4 * (2 * G + j)
                    e(f"buffer_load_dwordx4 v[{d}:{d+3}], v{9+G}, s[20:23], 0 offen offset:{j*1024}")
        elif ch[0] == "reg":
            a, p = ch[1:]
            so = soff(a * 9216 + p * 2048)
            for G in range(2):
                for j in range(2):
                    d = b + 4 * (2 * G + j)
                    e(f"buffer_load_dwordx4 v[{d}:{d+3}], v{5+G}, s[8:11], {so} offen offset:{j*1024}")
        elif ch[0] == "sp":
            u = ch[1]
            for h in range(2):
                so = soff((2 * u + h) * 9216 + 8192)
                for G in range(2):
                    d = b + 4 * (2 * G + h)
                    e(f"buffer_load_dwordx4 v[{d}:{d+3}], v{5+G}, s[8:11], {so} offen")
        else:
            u = ch[1]
            so = soff(u * 2048)
            for G in range(2):
                for h in range(2):
                    d = b + 4 * (2 * G + h)
                    e(f"buffer_load_dwordx4 v[{d}:{d+3}], v{7+G}, s[16:19], {so} offen offset:{h*1024}")
        r = sreg[0]
        sreg[0] = 40 + (sreg[0] - 40 + 1) % 16
        e(f"s_add_u32 s{r}, s32, {c*4608}")
        for nt in range(4):
            d = b + 16 + 4 * nt
            e(f"buffer_load_dwordx4 v[{d}:{d+3}], v3, s[12:15], s{r} offen offset:{nt*1024}")
        d = b + 32
        e(f"buffer_load_dwordx4 v[{d}:{d+3}], v4, s[12:15], s{r} offen")

    def mfmas(c):
        b = BUF0 + 36 * (c % DEPTH)
        if chunks[c][0] in ("sp", "om"):
            for G in range(2):
                d = b + 8 * G
                e(f"v_swap_b32 v{d+2}, v{d+4}\nv_swap_b32 v{d+3}, v{d+5}")
            e("s_nop 1")
        for nt in range(5):
            for rt in range(4):
                a = 20 * rt + 4 * nt
                e(f"v_mfma_f32_16x16x32_bf16 a[{a}:{a+3}], v[{b+16+4*nt}:{b+19+4*nt}], v[{b+4*rt}:{b+4*rt+3}], a[{a}:{a+3}]")

    n = len(chunks)
    e("s_cmp_ge_u32 s3, 2\ns_cbranch_scc1 g3_no0")
    loads(0)
    e("g3_no0:")
    for c in range(1, DEPTH):
        loads(c)
    for r in range(80):
        e(f"v_accvgpr_write_b32 a{r}, 0")
    e("s_cmp_ge_u32 s3, 2\ns_cbranch_scc1 g3_no0b")
    e(f"s_waitcnt vmcnt({9*(DEPTH-1)})")
    st.mid(0)
    mfmas(0)
    e("g3_no0b:")
    for c in range(1, n):
        nxt = c - 1 + DEPTH
        if nxt < n:
            loads(nxt)
            e(f"s_waitcnt vmcnt({9*(DEPTH-1)})")
        else:
            if nxt == n:
                e(f"buffer_load_dwordx4 v[{XR}:{XR+3}], v12, s[24:27], 0 offen")
                e(f"buffer_load_dwordx4 v[{XR+4}:{XR+7}], v12, s[24:27], 0 offen offset:64")
                e(f"buffer_load_dwordx2 v[{XR+8}:{XR+9}], v13, s[24:27], 0 offen offset:128")
            e(f"s_waitcnt vmcnt({9*(n-1-c)+3})")
        mfmas(c)
    st.mid(1)
    e("s_nop 7\ns_nop 3")
    T = BUF0
    for w in range(4):
        lab = f"g3_red{w}"
        e(f"s_cmp_lg_u32 s3, {w}\ns_cbranch_scc1 {lab}")
        for rt in range(4):
            if rt == w:
                continue
            q = (w - rt - 1) & 3
            for nt in range(5):
                a = 20 * rt + 4 * nt
                e(f"ds_write_b128 v3, a[{a}:{a+3}] offset:{((rt*3+q)*5+nt)*1024}")
        for r in range(20):
            e(f"v_accvgpr_read_b32 v{T+60+r}, a{20*w+r}")
        e(f"{lab}:")
    e(f"s_mul_i32 s6, s3, {15*1024}\nv_add_u32 v14, s6, v3")
    e("s_waitcnt lgkmcnt(0)\ns_barrier")
    for q in range(3):
        for nt in range(5):
            d = T + 20 * q + 4 * nt
            e(f"ds_read_b128 v[{d}:{d+3}], v14 offset:{(q*5+nt)*1024}")
    X = T + 80
    e("s_waitcnt vmcnt(0)")
    for dw in range(10):
        e(f"v_lshlrev_b32 v{X+2*dw}, 16, v{XR+dw}\nv_and_b32 v{X+2*dw+1}, 0xffff0000, v{XR+dw}")
    for r in range(20):
        e(f"v_add_f32 v{X+r}, v{X+r}, v{T+60+r}")
    for q in range(3):
        e(f"s_waitcnt lgkmcnt({5*(2-q)})")
        for r in range(20):
            e(f"v_add_f32 v{X+r}, v{X+r}, v{T+20*q+r}")
    for dw in range(10):
        e(f"v_cvt_pk_bf16_f32 v{XR+dw}, v{X+2*dw}, v{X+2*dw+1}")
    e(f"buffer_store_dwordx4 v[{XR}:{XR+3}], v12, s[28:31], 0 offen")
    e(f"buffer_store_dwordx4 v[{XR+4}:{XR+7}], v12, s[28:31], 0 offen offset:64")
    e("s_mov_b32 exec_hi, 0")
    e(f"buffer_store_dwordx2 v[{XR+8}:{XR+9}], v13, s[28:31], 0 offen offset:128")
    if stamp:
        e("s_mov_b64 exec, -1")
        e("s_waitcnt vmcnt(0)\ns_cmp_lg_u32 s3, 0\ns_cbranch_scc1 g3_end")
        st.end(32)
    e("g3_end:\ns_endpgm")
    return k


if __name__ == "__main__":
    open("t_g3.s", "w").write(build([gen_g3(stamp=True)]))
```

```python
import sys
from common import *
from g1 import gen_g1
from at import gen_at
from g2 import gen_g2
from g3 import gen_g3
def full(stamp=False):
    return build([gen_g1(stamp=stamp), gen_at(stamp=stamp), gen_g2(stamp=stamp, z1it=3), gen_g3(stamp=stamp)])
if __name__ == "__main__":
    open("parallel_sum__sliding_block__mixer_gmlp__prompt.s", "w").write(full())
    open("t_all.s", "w").write(full(True))
```

```python
from asmlib import *

OFF_Z2R = 0x0000000
OFF_Z2N = 0x0A00000
OFF_Z1 = 0x1400000
OFF_H = 0x1E00000
OFF_ST = 0x2800000
OFF_Q = 0x2900000
OFF_KV = 0x2D00000
OFF_OM = 0x3300000
OFF_OT = 0x3500000
OFF_W3 = 0x3600000
SZ_Z = 16 * 64 * 9216
SZ_ST = 64 * 16 * 512
SZ_Q = 32 * 64 * 1536
SZ_KV = 32 * 64 * 2688
OFF_QKV = 0x3A00000
QKV_U = 5248
SZ_QKV = 32 * 64 * QKV_U
OFF_FLG = 0x2880000
SZ_FLG = 65536
SZ_OM = 64 * 32 * 1024
SZ_OT = 64 * 4 * 1024
SZ_W3 = 8 * 4 * 23 * 4608
STAMP_OFF = 96 << 20
STAMP_K = 2048 * 64


def perm(j, i):
    return 8 * (i >> 2) + 4 * j + (i & 3)


class Stamps:
    def __init__(self, k, on, kidx):
        self.k, self.on, self.kidx = k, on, kidx

    def begin(self):
        if not self.on:
            return
        k = self.k
        k.e("s_memrealtime s[84:85]\ns_memtime s[86:87]")
        for i in range(4):
            k.e(f"s_memtime s[{92+2*i}:{93+2*i}]")
        k.e(f"s_load_dwordx2 s[80:81], s[0:1], {KARG['ws']}")

    def mid(self, i):
        if self.on:
            self.k.e(f"s_memtime s[{92+2*i}:{93+2*i}]")

    def end(self, vt):
        if not self.on:
            return
        k = self.k
        k.e("s_memrealtime s[88:89]\ns_memtime s[90:91]\ns_waitcnt lgkmcnt(0)")
        k.srd_fin(80, "ws", size=STAMP_K, off=STAMP_OFF + self.kidx * STAMP_K)
        for i in range(16):
            k.e(f"v_mov_b32 v{vt+i}, s{84+i}")
        k.e(f"s_lshl_b32 vcc_lo, s2, 6\nv_mov_b32 v{vt+16}, vcc_lo")
        k.e("s_mov_b64 exec, 1")
        for q in range(4):
            k.e(f"buffer_store_dwordx4 v[{vt+4*q}:{vt+4*q+3}], v{vt+16}, s[80:83], 0 offen offset:{16*q}")
        k.e("s_mov_b64 exec, -1")


class Trk:
    def __init__(self, k, name, mx):
        self.k, self.name, self.mx, self.q = k, name, mx, []

    def issue(self, tag=None):
        self.q.append(tag)

    def pending(self, tag):
        return tag in self.q

    def wait(self, tag):
        if tag not in self.q:
            return
        last = len(self.q) - 1 - self.q[::-1].index(tag)
        n = min(len(self.q) - 1 - last, self.mx)
        self.k.e(f"s_waitcnt {self.name}({n})")
        self.q = self.q[len(self.q) - n:] if n else []

    def drain(self):
        self.k.e(f"s_waitcnt {self.name}(0)")
        self.q = []
```

```python
from common import *

STG = 18432
RING = 6
PARK = RING * STG
XST = 73728
SCR = 155648
LDS = SCR + 4608
X0, B0, B1, WIN, TMP = 16, 160, 200, 232, 248
LEAD = 4
W3L = 3 * STG


def gen_g1(stamp=False, kidx=0, rateA=(4, 3), rateB=(3, 4), nogelu=False):
    k = Kern("g1_kernel", 256, 512, LDS, 256, sgpr=102)
    st = Stamps(k, stamp, kidx)
    e = k.e
    e("s_cmp_ge_u32 s2, 256\ns_cbranch_scc1 g1_end")
    st.begin()
    k.srd(8, "x"); k.srd(12, "win"); k.srd(16, "wqkv"); k.srd(20, "ws"); k.srd(40, "dbg")
    k.srd(68, "wout"); k.srd(60, "wo"); k.srd(76, "wsp")
    e("s_memrealtime s[52:53]")
    e("v_lshrrev_b32 v2, 6, v0\nv_and_b32 v1, 63, v0")
    e("s_nop 0\nv_readfirstlane_b32 s3, v2")
    e("""s_and_b32 s4, s2, 1
    s_lshl_b32 s4, s4, 3
    s_bfe_u32 s6, s2, 0x30003
    s_add_u32 s4, s4, s6
    s_bfe_u32 s5, s2, 0x20001
    s_lshl_b32 s5, s5, 2
    s_lshr_b32 s6, s2, 6
    s_add_u32 s5, s5, s6
    s_and_b32 s44, s3, 3
    v_lshlrev_b32 v2, 4, v1
    v_lshrrev_b32 v3, 3, v1
    v_mul_u32_u24 v3, 1152, v3
    v_and_b32 v4, 7, v1
    v_lshlrev_b32 v4, 4, v4
    v_add_u32 v3, v3, v4
    s_lshl_b32 s6, s4, 3
    s_add_u32 s6, s6, s3
    s_mul_i32 s6, s6, 18432
    s_add_u32 s7, s6, 9216
    s_waitcnt lgkmcnt(0)""")
    k.srd_fin(8, "x")
    for u in range(9):
        for h in range(2):
            d = B0 + 36 * h + 4 * u
            e(f"buffer_load_dwordx4 v[{d}:{d+3}], v3, s[8:11], s{6+h} offen offset:{u*128}")
    k.srd_fin(12, "win"); k.srd_fin(16, "wqkv"); k.srd_fin(40, "dbg")
    for s in (24, 28, 32, 36, 72):
        e(f"s_mov_b64 s[{s}:{s+1}], s[20:21]")
    k.srd_fin(72, "ws", size=SZ_W3, off=OFF_W3)
    k.srd_fin(76, "wsp")
    e("""s_lshl_b32 s67, s2, 2
    s_add_u32 s67, s67, s44
    s_sub_u32 s64, s67, 512
    s_cmp_ge_u32 s67, 736
    s_cselect_b32 s64, s64, s67
    s_mul_i32 s62, s64, 2850
    s_lshr_b32 s62, s62, 16
    s_mul_i32 s63, s62, 23
    s_sub_u32 s63, s64, s63
    s_lshr_b32 s64, s62, 2
    s_and_b32 s62, s62, 3
    s_sub_u32 s49, s63, 1
    s_lshr_b32 s65, s49, 2
    s_mul_i32 s65, s65, 144
    s_and_b32 s49, s49, 3
    s_lshl_b32 s49, s49, 5
    s_add_u32 s49, s49, s65
    s_mul_i32 s65, s62, 576
    s_add_u32 s49, s49, s65
    s_mov_b32 s51, 16
    s_mov_b32 s59, 4
    s_sub_u32 s66, s63, 17
    s_mul_i32 s66, s66, 288
    s_add_u32 s66, s66, s65
    s_add_u32 s66, s66, 128
    s_cmp_ge_u32 s63, 17
    s_cselect_b32 s49, s66, s49
    s_cselect_b32 s51, 144, s51
    s_sub_u32 s66, s63, 19
    s_mul_i32 s66, s66, 36
    s_mul_i32 s65, s62, 144
    s_add_u32 s66, s66, s65
    s_cmp_ge_u32 s63, 19
    s_cselect_b32 s49, s66, s49
    s_cselect_b32 s51, 20, s51
    s_cselect_b32 s65, 1, 0
    s_and_b32 s66, s62, 1
    s_mul_i32 s66, s66, 288
    s_add_u32 s66, s66, 16
    s_cmp_eq_u32 s63, 0
    s_cselect_b32 s49, s66, s49
    s_cselect_b32 s51, 36, s51
    s_cselect_b32 s59, 72, s59
    s_cselect_b32 s65, 1, s65
    s_cmp_eq_u32 s65, 1
    s_cselect_b32 s68, s60, s68
    s_cselect_b32 s69, s61, s69""")
    e(f"s_mov_b32 s70, {SIZES['wout']}\ns_cselect_b32 s70, {SIZES['wo']}, s70\ns_and_b32 s69, s69, 0xffff\ns_mov_b32 s71, 0x00020000")
    e("s_mul_i32 s49, s49, 1152\ns_mul_i32 s66, s64, 144\ns_add_u32 s49, s49, s66")
    e("s_mul_i32 s51, s51, 1152\ns_mul_i32 s59, s59, 1152")
    k.srd_fin(20, "ws", size=SZ_Z, off=OFF_Z2N)
    k.srd_fin(24, "ws", size=SZ_Z, off=OFF_Z1)
    k.srd_fin(28, "ws", size=SZ_Q, off=OFF_Q)
    k.srd_fin(32, "ws", size=SZ_KV, off=OFF_KV)
    k.srd_fin(36, "ws", size=SZ_ST, off=OFF_ST)
    e("""s_mul_i32 s54, s5, 288
    s_add_u32 s55, s54, 4608
    s_mul_i32 s56, s5, 72
    s_and_b32 s57, s56, 15
    s_and_b32 s56, s56, 0xfffffff0
    s_mov_b32 s47, 0xbdd2d3e8
    s_mov_b32 s50, 0x3f803f80
    s_lshl_b32 s58, s4, 2
    s_add_u32 s58, s58, s44""")
    e("s_cmp_ge_u32 s3, 4\ns_cbranch_scc1 g1_pathB")
    info = {}
    LB = None
    saved = k.L
    bodies = {}
    for hf in (1, 0):
        k.L = []
        body(k, st, hf, info, rateA if hf == 0 else rateB, stamp, nogelu)
        bodies[hf] = k.L
    k.L = saved + bodies[0] + ["g1_pathB:"] + bodies[1]
    e("g1_end:\ns_endpgm")
    return k


def body(k, st, hf, info, rate, stamp, nogelu):
    e = k.e
    vm = Trk(k, "vmcnt", 63)
    lg = Trk(k, "lgkmcnt", 15)
    for u in range(9):
        for h in range(2):
            vm.issue(("x", u))
    npc = 2 + hf
    if hf == 0:
        e("s_lshl_b32 s6, s44, 7")
    else:
        e("s_mul_i32 s6, s44, 160\ns_add_u32 s6, s6, 512")
    e("s_lshl_b32 s46, s6, 4")
    T = TMP
    for p in range(npc):
        e(f"""v_add_u32 v{T}, s6, v1
        v_add_u32 v{T}, {64*p}, v{T}
        v_mul_u32_u24 v{T+1}, 3641, v{T}
        v_lshrrev_b32 v{T+1}, 16, v{T+1}
        v_mul_u32_u24 v{T+2}, 18, v{T+1}
        v_sub_u32 v{T+2}, v{T}, v{T+2}
        v_and_b32 v{T+3}, 0x23, v{T+1}
        v_and_b32 v{T+4}, 12, v{T+1}
        v_lshl_or_b32 v{T+3}, v{T+4}, 1, v{T+3}
        v_and_b32 v{T+4}, 16, v{T+1}
        v_lshrrev_b32 v{T+4}, 2, v{T+4}
        v_or_b32 v{T+3}, v{T+3}, v{T+4}
        v_mul_u32_u24 v{7+p}, 9216, v{T+3}
        v_lshl_add_u32 v{7+p}, v{T+2}, 4, v{7+p}
        v_mul_u32_u24 v{10+p}, 3456, v{T+3}
        v_mul_u32_u24 v{T+4}, 43, v{T+2}
        v_lshrrev_b32 v{T+4}, 8, v{T+4}
        v_mul_u32_u24 v{T+5}, 6, v{T+4}
        v_sub_u32 v{T+5}, v{T+2}, v{T+5}
        v_min_u32 v{T+5}, 4, v{T+5}
        v_mul_u32_u24 v{T+4}, 1152, v{T+4}
        v_lshl_add_u32 v{T+4}, v{T+5}, 4, v{T+4}
        v_add_u32 v{10+p}, v{10+p}, v{T+4}""")
        if p:
            e(f"v_subrev_u32 v{7+p}, {1024*p}, v{7+p}\nv_subrev_u32 v{10+p}, {1024*p}, v{10+p}")

    def dma_setup(s):
        ps, q = divmod(s, 9)
        base, stride = [("s55", 589824), ("s54", 589824), ("s56", 221184)][ps]
        e(f"s_add_u32 s45, {base}, {q*stride}\ns_add_u32 m0, s46, {(s % RING)*STG}")

    def dma_piece(s, p):
        vo, srd = (7 + p, "s[12:15]") if s < 18 else (10 + p, "s[16:19]")
        if p == 2:
            e("s_mov_b32 exec_hi, 0")
        else:
            e("s_nop 0")
        e(f"buffer_load_dwordx4 v{vo}, {srd}, s45 offen offset:{1024*p} lds")
        if p == 2:
            e("s_mov_b32 exec_hi, -1")
        vm.issue(("dma", s))

    for s in range(LEAD):
        dma_setup(s)
        for p in range(npc):
            dma_piece(s, p)
    if hf == 0:
        e("s_cmp_lg_u32 s3, 0\ns_cbranch_scc1 g1_nononce")
        e("""s_or_b32 s52, s52, 1
        s_lshl_b32 s6, s4, 4
        v_mov_b32 v14, s52
        v_mov_b32 v15, 0
        s_mov_b64 exec, 1
        buffer_atomic_cmpswap v[14:15], off, s[40:43], s6 sc0 sc1
        s_mov_b64 exec, -1
        g1_nononce:""")
    e(f"""v_lshrrev_b32 v{T}, 3, v1
    v_and_b32 v{T+1}, 7, v1
    v_and_b32 v{T+2}, 3, v{T}
    s_and_b32 s6, s3, 1
    s_lshl_b32 s6, s6, 3
    v_or_b32 v{T+2}, s6, v{T+2}
    v_xor_b32 v{T+2}, v{T+2}, v{T+1}
    v_lshlrev_b32 v{T+2}, 4, v{T+2}
    v_lshl_add_u32 v{T+2}, v{T+1}, 8, v{T+2}
    v_lshrrev_b32 v{T}, 2, v{T}
    v_mul_u32_u24 v{T}, 10240, v{T}
    s_lshr_b32 s6, s3, 1
    s_mul_i32 s6, s6, 20480
    s_add_u32 s6, s6, {XST}
    v_add3_u32 v{WIN}, v{T}, v{T+2}, s6
    v_xor_b32 v{WIN+1}, 64, v{WIN}
    v_lshrrev_b32 v{T}, 4, v1
    v_and_b32 v{T+1}, 15, v1
    v_xor_b32 v{T+1}, v{T+1}, v{T}
    v_lshlrev_b32 v{T+1}, 4, v{T+1}
    v_lshl_add_u32 v{T+1}, v{T}, 8, v{T+1}
    s_mul_i32 s6, s44, 20480
    s_add_u32 s6, s6, {XST}
    v_add_u32 v{WIN+2}, s6, v{T+1}
    v_xor_b32 v{WIN+3}, 64, v{WIN+2}
    v_lshrrev_b32 v{T}, 2, v1
    v_mul_u32_u24 v{T}, 288, v{T}
    v_and_b32 v{T+1}, 3, v1
    v_lshl_add_u32 v3, v{T+1}, 3, v{T}
    v_add_u32 v4, {3*STG}, v3
    s_add_u32 s6, s57, {32 if hf == 0 else 224}
    v_add_u32 v5, s6, v{T}""")
    if hf == 0:
        e(f"v_and_b32 v{T+1}, 1, v1\nv_mul_u32_u24 v{T+1}, 96, v{T+1}\nv_add_u32 v5, v5, v{T+1}")
    e(f"""v_add_u32 v6, {3*STG}, v5
    s_mul_i32 s6, s44, 9216
    s_add_u32 s6, s6, {PARK + hf*5120}
    v_lshlrev_b32 v13, 2, v1
    v_add_u32 v13, s6, v13""")
    S, Q = WIN + 4, WIN + 6
    for u in range(9):
        vm.wait(("x", u))
        for d in range(4):
            for h in range(2):
                r = B0 + 36 * h + 4 * u + d
                first = (u == 0 and d == 0)
                e(f"v_dot2_f32_bf16 v{S+h}, v{r}, s50, {0 if first else f'v{S+h}'}")
                e(f"v_dot2_f32_bf16 v{Q+h}, v{r}, v{r}, {0 if first else f'v{Q+h}'}")
    e(f"s_lshl_b32 s6, s2, 3\ns_add_u32 s6, s6, s3\ns_lshl_b32 s6, s6, 12\nv_lshlrev_b32 v0, 6, v1")
    e(f"buffer_load_dword v0, v0, s[76:79], s6 offen"); vm.issue()
    e("s_nop 2")
    for ctl in ("quad_perm:[1,0,3,2]", "quad_perm:[2,3,0,1]", "row_half_mirror"):
        for r in range(4):
            e(f"v_add_f32_dpp v{S+r}, v{S+r}, v{S+r} {ctl} row_mask:0xf bank_mask:0xf")
    R = WIN + 8
    for h in range(2):
        e(f"v_mul_f32 v{S+h}, 0x3ae38e39, v{S+h}")
        e(f"v_mul_f32 v{Q+h}, 0x3ae38e39, v{Q+h}")
    for h in range(2):
        e(f"v_fma_f32 v{Q+h}, -v{S+h}, v{S+h}, v{Q+h}")
    for h in range(2):
        e(f"v_add_f32 v{Q+h}, 0x3727c5ac, v{Q+h}")
    for h in range(2):
        e(f"v_rsq_f32 v{R+4*h}, v{Q+h}")
    e("s_nop 0")
    for h in range(2):
        e(f"v_mul_f32 v{R+4*h+2}, v{S+h}, v{R+4*h}")

    def norm(h, u):
        a = B0 + 36 * h + 4 * u
        for d in range(4):
            e(f"v_lshlrev_b32 v{T+2*d}, 16, v{a+d}\nv_and_b32 v{T+2*d+1}, 0xffff0000, v{a+d}")
        for d in range(4):
            e(f"v_pk_fma_f32 v[{T+2*d}:{T+2*d+1}], v[{T+2*d}:{T+2*d+1}], v[{R+4*h}:{R+4*h+1}], v[{R+4*h+2}:{R+4*h+3}] op_sel_hi:[1,0,0] neg_lo:[0,0,1] neg_hi:[0,0,1]")
        for d in range(4):
            e(f"v_cvt_pk_bf16_f32 v{a+d}, v{T+2*d}, v{T+2*d+1}")

    def xw(h, u, u0):
        a = B0 + 36 * h + 4 * u
        e(f"ds_write_b128 v{WIN+h}, v[{a}:{a+3}] offset:{(u-u0)*2048}")

    def xr(t0, t1):
        for t in range(t0, t1):
            for j in range(2):
                d = X0 + 8 * t + 4 * j
                e(f"ds_read_b128 v[{d}:{d+3}], v{WIN+2+(t&1)} offset:{j*10240+(t-t0)*1024}")

    for u in range(4):
        for h in range(2):
            norm(h, u); xw(h, u, 0)
    for u in range(4, 7):
        for h in range(2):
            norm(h, u)
    e("s_waitcnt lgkmcnt(0)\ns_barrier")
    xr(0, 8)
    for u in range(7, 9):
        for h in range(2):
            norm(h, u)
    e("s_waitcnt lgkmcnt(0)\ns_barrier")
    for u in range(4, 9):
        for h in range(2):
            xw(h, u, 4)
    e("s_waitcnt lgkmcnt(0)\ns_barrier")
    xr(8, 18)
    e("s_waitcnt lgkmcnt(0)")
    st.mid(0)

    if hf == 0:
        P = [[(32*t, 0, B0 + 8*t, 'N') for t in range(5)],
             [(32*t, 0, B1 + 8*t, 'T') for t in range(4)],
             [(0, 0, B0, 'T'), (40, 0, B0+8, 'T'), (96, 0, B0+16, 'T'), (136, 0, B0+24, 'T'), (0, 1, B0+32, 'T')]]
        z2t, z1t = list(range(5)), list(range(4))
        BZ2, BZ1 = B0, B1
    else:
        P = [[(32*(5+t), 0, B1 + 8*t, 'N') for t in range(4)],
             [(32*(4+t), 0, B0 + 8*t, 'T') for t in range(5)],
             [(192, 0, B1, 'N'), (232, 0, B1+8, 'N'), (0, 1, B1+16, 'N')]]
        z2t, z1t = list(range(5, 9)), list(range(4, 9))
        BZ2, BZ1 = B1, B0
    frags = [(s, kk, ti) for s in range(27) for kk in range(2) for ti in range(len(P[s // 9]))]
    NF = len(frags)
    cur = dict(stage=-1)
    timed = {}

    def rd(n):
        s, kk, ti = frags[n]
        if kk == 0 and ti == 0:
            vm.wait(("dma", s))
            e("s_barrier")
            cur['stage'] = s
            if 'bw' in info and hf == 1 and 'bvis' not in info and not lg.pending('bw'):
                info['bvis'] = s
            if s == 18:
                e("v_add_u32 v3, s57, v3\nv_add_u32 v4, s57, v4")
            if s + LEAD < 27:
                for p in range(npc):
                    def f(p=p, s=s):
                        if p == 0:
                            dma_setup(s + LEAD)
                        dma_piece(s + LEAD, p)
                    timed.setdefault(max(0, n - 3 + 1 + 2 * p), []).append(f)
        col, kind, _, _ = P[s // 9][ti]
        b = s % RING
        a = (3 if kind == 0 else 5) + (1 if b >= 3 else 0)
        o = (b % 3) * STG + kk * 32 * 288 + col
        w = WIN + 4 * (n % 4)
        e(f"ds_read_b64_tr_b16 v[{w}:{w+1}], v{a} offset:{o}")
        e(f"ds_read_b64_tr_b16 v[{w+2}:{w+3}], v{a} offset:{o+16*288}")
        lg.issue(None); lg.issue(("f", n))

    fill = []

    def gelu4(acc):
        n = len(acc)
        L = []
        L += [f"v_fmaak_f32 v{T+i}, v{a}, v{a}, 0x41b2e92f" for i, a in enumerate(acc)]
        L += [f"v_mul_f32 v{T+4+i}, s47, v{a}" for i, a in enumerate(acc)]
        L += [f"v_mul_f32 v{T+i}, v{T+i}, v{T+4+i}" for i in range(n)]
        L += [f"v_exp_f32 v{T+i}, v{T+i}" for i in range(n)]
        L += [f"v_add_f32 v{T+i}, 1.0, v{T+i}" for i in range(n)]
        L += [f"v_rcp_f32 v{T+i}, v{T+i}" for i in range(n)]
        L += [f"v_mul_f32 v{T+4+i}, v{a}, v{T+i}" for i, a in enumerate(acc)]
        return L

    def dsop(txt, tag=None):
        def f():
            e(txt); lg.issue(tag)
        return f

    def vmop(txt, tag=None):
        def f():
            e(txt); vm.issue(tag)
        return f

    def z2fill():
        L = []
        nt = len(z2t)
        for j in range(2):
            for rp in range(2):
                for p0 in range(0, nt, 2):
                    tl = [t for t in (p0, p0 + 1) if t < nt]
                    acc = [BZ2 + 8*t + 4*j + 2*rp + r for t in tl for r in range(2)]
                    L += gelu4(acc)
                    for i, t in enumerate(tl):
                        L.append(f"v_cvt_pk_bf16_f32 v{T+2*i}, v{T+4+2*i}, v{T+5+2*i}")
                    for r in range(2):
                        sS = BZ2 + 4*j + 2*rp + r
                        sQ = sS + 8
                        if p0 == 0:
                            L += [f"v_add_f32 v{sS}, v{T+4+r}, v{T+6+r}", f"v_mul_f32 v{sQ}, v{T+4+r}, v{T+4+r}"]
                        else:
                            L += [f"v_add_f32 v{sS}, v{sS}, v{T+4+r}", f"v_fmac_f32 v{sQ}, v{T+4+r}, v{T+4+r}"]
                    for i, t in enumerate(tl):
                        L.append(dsop(f"ds_write_b32 v13, v{T+2*i} offset:{(t*4 + 2*j + rp)*256}"))
                    if len(tl) == 2:
                        for r in range(2):
                            sS = BZ2 + 4*j + 2*rp + r
                            sQ = sS + 8
                            if p0:
                                L.append(f"v_add_f32 v{sS}, v{sS}, v{T+6+r}")
                            L.append(f"v_fmac_f32 v{sQ}, v{T+6+r}, v{T+6+r}")
        L.append("s_nop 1")
        for bm, src in (("0x3", 0), ("0xc", 4)):
            for q in range(2):
                for r in range(4):
                    a = BZ2 + 8*q + r
                    L.append(f"v_add_f32_dpp v{a}, v{a+src}, v{a+src} row_mirror row_mask:0xf bank_mask:{bm}")
        for bm, src in (("0x5", 0), ("0xa", 2)):
            for q in range(2):
                for r in range(2):
                    a = BZ2 + 8*q + r
                    L.append(f"v_add_f32_dpp v{a}, v{a+src}, v{a+src} row_half_mirror row_mask:0xf bank_mask:{bm}")
        for ctl in ("quad_perm:[1,0,3,2]", "quad_perm:[2,3,0,1]"):
            for q in range(2):
                for r in range(2):
                    a = BZ2 + 8*q + r
                    L.append(f"v_add_f32_dpp v{a}, v{a}, v{a} {ctl} row_mask:0xf bank_mask:0xf")
        L.append("s_mov_b32 s60, 0xaaaaaaaa\ns_mov_b32 s61, 0xaaaaaaaa")
        L.append(f"s_lshl_b32 s6, s44, 9\ns_add_u32 s6, s6, {SCR+256}")
        L.append(f"v_lshlrev_b32 v{T+7}, 3, v1")
        L.append(f"v_add_u32 v{T+7}, s6, v{T+7}")
        if hf == 1:
            L.append(f"v_cndmask_b32 v{T}, v{BZ2}, v{BZ2+1}, s[60:61]")
            L.append(f"v_cndmask_b32 v{T+1}, v{BZ2+8}, v{BZ2+9}, s[60:61]")
            def f():
                e(f"ds_write_b64 v{T+7}, v[{T}:{T+1}]"); lg.issue('bw'); info['bw'] = True
            L.append(f)
        else:
            L.append(f"v_cndmask_b32 v{T}, v{BZ2}, v{BZ2+1}, s[60:61]")
            L.append(f"v_cndmask_b32 v{T+2}, v{BZ2+8}, v{BZ2+9}, s[60:61]")
            L.append(("hold", info['bvis']))
            L.append(dsop(f"ds_read_b64 v[{T+4}:{T+5}], v{T+7}", 'br'))
            L.append(f"v_lshrrev_b32 v{T+6}, 2, v1")
            L.append(f"v_and_b32 v{T+7}, 1, v1")
            L.append(f"v_lshl_or_b32 v{T+6}, v{T+6}, 1, v{T+7}")
            L.append(f"v_lshlrev_b32 v{T+6}, 4, v{T+6}")
            L.append(f"v_mov_b32 v{T+1}, s48")
            L.append(f"v_mov_b32 v{T+3}, s48")
            L.append("s_lshl_b32 s6, s58, 4\ns_add_u32 s6, s6, s5\ns_lshl_b32 s6, s6, 9")
            L.append(("skip", 4))
            L.append(lambda: lg.wait('br'))
            L.append(f"v_add_f32 v{T}, v{T}, v{T+4}")
            L.append(f"v_add_f32 v{T+2}, v{T+2}, v{T+5}")
            L.append(vmop(f"s_mov_b32 exec_lo, 0x33333333\ns_mov_b32 exec_hi, 0x33333333\n"
                          f"buffer_store_dwordx4 v[{T}:{T+3}], v{T+6}, s[36:39], s6 offen sc1\ns_mov_b64 exec, -1\ns_nop 0"))
        return L

    def z1fill():
        L = []
        L.append(f"s_lshl_b32 s6, s4, 4\ns_add_u32 s6, s6, s5\ns_lshl_b32 s6, s6, 2\ns_add_u32 s6, s6, s44\n"
                 f"s_mul_i32 s6, s6, 9216\ns_add_u32 s62, s6, {z1t[0]*1024}\ns_add_u32 s63, s62, 4096")
        for i, t in enumerate(z1t):
            b = BZ1 + 8 * i
            for j in range(2):
                L += gelu4([b + 4*j + r for r in range(4)])
                L.append(f"v_cvt_pk_bf16_f32 v{b+2*j}, v{T+4}, v{T+5}")
                L.append(f"v_cvt_pk_bf16_f32 v{b+2*j+1}, v{T+6}, v{T+7}")
            L.append(vmop(f"buffer_store_dwordx4 v[{b}:{b+3}], v2, s[24:27], {'s62' if i < 4 else 's63'} offen offset:{(i%4)*1024}"))
        return L

    skip = [0]

    def pump(n):
        while n > 0 and fill:
            if skip[0] > 0:
                skip[0] -= 1
                return
            it = fill[0]
            if isinstance(it, tuple):
                if it[0] == "hold":
                    if cur['stage'] < it[1]:
                        return
                    fill.pop(0)
                    continue
                skip[0] = it[1]
                fill.pop(0)
                continue
            fill.pop(0)
            it() if callable(it) else e(it)
            n -= 1

    def flush():
        skip[0] = 0
        while fill:
            assert not (isinstance(fill[0], tuple) and fill[0][0] == "hold" and cur['stage'] < fill[0][1])
            skip[0] = 0
            pump(1000)

    GS = X0

    def gather():
        e("s_lshl_b32 s6, s58, 13\ns_add_u32 s7, s6, 4096")
        for q in range(8):
            e(f"buffer_load_dwordx4 v[{GS+4*q}:{GS+4*q+3}], v2, s[36:39], s{6+q//4} offen offset:{(q%4)*1024} sc1")
            vm.issue('gs')

    for n in range(3):
        rd(n)
    for n in range(NF):
        s, kk, ti = frags[n]
        ps = s // 9
        if kk == 0 and ti == 0 and s % 9 == 0 and ps > 0:
            flush()
            if not nogelu:
                fill += [("skip", 4)] + (z2fill() if ps == 1 else z1fill())
        if kk == 0 and ti == 0 and s == 5:
            if hf == 0:
                e(f"""s_cmp_lg_u32 s3, 0
                s_cbranch_scc1 g1_nn2
                v_readfirstlane_b32 s6, v14
                s_cmp_eq_u32 s6, 0
                s_cselect_b32 s6, s52, s6
                v_mov_b32 v14, s6
                v_mov_b32 v15, {SCR}
                ds_write_b32 v15, v14
                s_waitcnt lgkmcnt(0)
                g1_nn2:""")
        if kk == 0 and ti == 0 and s == 7:
            e(f"v_mov_b32 v15, {SCR}\nds_read_b32 v14, v15"); lg.issue('nonce')
        if kk == 0 and ti == 0 and s == 8:
            lg.wait('nonce')
            e("v_readfirstlane_b32 s48, v14")
        if kk == 0 and ti == 0 and s == 25:
            gather()
        if hf == 1 and s == 23 and n - frags.index((23, 0, 0)) in range(1, 6):
            p = n - frags.index((23, 0, 0)) - 1
            U = X0 + 72
            e(f"""v_add_u32 v{U}, {64*p}, v1
            v_mul_u32_u24 v{U+1}, 7282, v{U}
            v_lshrrev_b32 v{U+1}, 16, v{U+1}
            v_mul_u32_u24 v{U+2}, 9, v{U+1}
            v_sub_u32 v{U+2}, v{U}, v{U+2}
            v_lshlrev_b32 v{U+2}, 4, v{U+2}
            v_and_b32 v{U}, 3, v{U+1}
            v_mul_u32_u24 v{U}, 1152, v{U}
            v_add_u32 v{U+2}, v{U+2}, v{U}
            v_bfe_u32 v{U}, v{U+1}, 2, 2
            v_mul_u32_u24 v{U}, s59, v{U}
            v_add_u32 v{U+2}, v{U+2}, v{U}
            v_bfe_u32 v{U}, v{U+1}, 4, 1
            v_mul_u32_u24 v{U}, s51, v{U}
            v_add_u32 v{U+3+p}, v{U+2}, v{U}
            s_mul_i32 s6, s44, 4608
            s_add_u32 m0, s6, {W3L + 1024*p}""")
            e("s_mov_b32 exec_hi, 0" if p == 4 else "s_nop 0")
            e(f"buffer_load_dwordx4 v{U+3+p}, s[68:71], s49 offen lds"); vm.issue('w3')
            if p == 4:
                e("s_mov_b32 exec_hi, -1")
        lg.wait(("f", n))
        _, _, acc, ori = P[ps][ti]
        t = (s % 9) * 2 + kk
        w = WIN + 4 * (n % 4)
        for j in range(2):
            x = X0 + 8 * t + 4 * j
            c = acc + 4 * j
            A, B = (x, w) if ori == 'N' else (w, x)
            src = "0" if t == 0 else f"v[{c}:{c+3}]"
            e(f"v_mfma_f32_16x16x32_bf16 v[{c}:{c+3}], v[{A}:{A+3}], v[{B}:{B+3}], {src}")
            if j == 0 and n + 3 < NF:
                pass
            if ps > 0:
                pump(rate[ps - 1])
        if n + 3 < NF:
            rd(n + 3) if False else None
        for f in timed.pop(n, []):
            f()
        if n + 3 < NF:
            rd(n + 3)
    assert not timed, timed.keys()
    st.mid(1)
    flush()
    PZ = X0 + 48
    nt = len(z2t)
    for t in range(nt):
        for q in range(2):
            e(f"ds_read2st64_b32 v[{PZ+4*t+2*q}:{PZ+4*t+2*q+1}], v13 offset0:{t*4+2*q} offset1:{t*4+2*q+1}")
    e("s_nop 4")
    if hf == 0:
        e(f"v_mul_u32_u24 v{T+7}, 12, v1")
        e(f"s_lshl_b32 s6, s5, 7\ns_add_u32 s6, s6, s58\ns_mul_i32 s62, s6, 1536\ns_add_u32 s63, s62, {64*1536}")
        e(f"s_mul_i32 s64, s6, 2688\ns_add_u32 s65, s64, {64*2688}")
        e("s_mov_b32 s60, -1\ns_mov_b32 s61, 0")
        TT = B0 + 32
        for j in range(2):
            for hh in range(2):
                e(f"v_cvt_pk_bf16_f32 v{T+2*j+hh}, v{TT+4*j+2*hh}, v{TT+4*j+2*hh+1}")
        for ti in range(4):
            for j in range(2):
                c = B0 + 8 * ti + 4 * j
                e(f"v_cvt_pk_bf16_f32 v{c}, v{c}, v{c+1}\nv_cvt_pk_bf16_f32 v{c+1}, v{c+2}, v{c+3}")
                if ti >= 2:
                    e(f"v_mov_b32 v{c+2}, v{T+2*j+(ti&1)}")
                else:
                    e(f"v_mov_b32 v{c+2}, 0\nv_cndmask_b32 v{c+3}, 0, v{T+2*j+ti}, s[60:61]")
        for j in range(2):
            for ti in range(2):
                c = B0 + 8 * ti + 4 * j
                e(f"v_permlane16_swap_b32 v{c+2}, v{c+3}")
        for ti in (2, 3, 0, 1):
            for j in range(2):
                c = B0 + 8 * ti + 4 * j
                srd = "s[28:31]" if ti < 2 else "s[32:35]"
                e(f"buffer_store_dwordx3 v[{c}:{c+2}], v{T+7}, {srd}, s{62+ti} offen offset:{768*j}")
                vm.issue()
    else:
        e(f"s_lshl_b32 s6, s5, 7\ns_add_u32 s6, s6, s58\ns_mul_i32 s64, s6, 2688\ns_add_u32 s65, s64, {64*2688}")
        e(f"""v_bfe_u32 v{T+7}, v1, 1, 1
        v_mul_u32_u24 v{T+7}, {64*2688}, v{T+7}
        v_and_b32 v{T+6}, 1, v1
        v_lshl_add_u32 v{T+7}, v{T+6}, 6, v{T+7}
        v_lshrrev_b32 v{T+6}, 4, v1
        v_lshl_add_u32 v{T+7}, v{T+6}, 4, v{T+7}""")
        for ti in range(3):
            c = B1 + 8 * ti
            for q in range(4):
                e(f"v_cvt_pk_bf16_f32 v{c+q}, v{c+2*q}, v{c+2*q+1}")
        for ti in range(2):
            c = B1 + 8 * ti
            e(f"buffer_store_dwordx4 v[{c}:{c+3}], v2, s[32:35], s{64+ti} offen offset:1536")
            vm.issue()
        c = B1 + 16
        e("s_mov_b32 exec_lo, 0x000f000f\ns_mov_b32 exec_hi, 0x000f000f")
        e(f"buffer_store_dwordx4 v[{c}:{c+3}], v{T+7}, s[32:35], s64 offen offset:2560")
        vm.issue()
        e("s_mov_b64 exec, -1")
    if hf == 1:
        U = X0 + 72
        B = X0 + 80
        e(f"""v_lshrrev_b32 v{U}, 2, v1
        v_mul_u32_u24 v{U}, 144, v{U}
        s_mul_i32 s6, s44, 4608
        s_add_u32 s6, s6, {W3L}
        v_add_u32 v{U}, s6, v{U}
        v_and_b32 v{U+1}, 1, v1
        v_lshl_add_u32 v{U+1}, v{U+1}, 3, v{U}
        v_and_b32 v{U+2}, 3, v1
        v_lshl_add_u32 v{U}, v{U+2}, 4, v{U}
        v_lshrrev_b32 v{U+2}, 4, v1
        v_lshlrev_b32 v{U+2}, 3, v{U+2}
        v_and_b32 v{U+3}, 7, v1
        v_add_u32 v{U+2}, v{U+2}, v{U+3}
        v_lshlrev_b32 v{U+2}, 4, v{U+2}""")
        vm.wait('w3')
        for t in range(4):
            for hh in range(2):
                e(f"ds_read_b64_tr_b16 v[{B+4*t+2*hh}:{B+4*t+2*hh+1}], v{U} offset:{hh*16*144 + 64*(t>>1) + 8*(t&1)}")
        for hh in range(2):
            e(f"ds_read_b64_tr_b16 v[{B+16+2*hh}:{B+16+2*hh+1}], v{U+1} offset:{hh*16*144 + 128}")
    vm.wait('gs')
    e("s_mov_b32 s66, 4096")
    L1, L2 = f"g1_chk{hf}", f"g1_ok{hf}"
    e(f"{L1}:")
    tags = [GS + 2 * i + 1 for i in range(16)]
    for op, d in (("min", T), ("max", T + 1)):
        e(f"v_{op}3_u32 v{d}, v{tags[0]}, v{tags[1]}, v{tags[2]}")
        for i in range(3, 15, 2):
            e(f"v_{op}3_u32 v{d}, v{d}, v{tags[i]}, v{tags[i+1]}")
        e(f"v_{op}_u32 v{d}, v{d}, v{tags[15]}")
    e(f"""v_cmp_ne_u32 vcc, s48, v{T}
    v_cmp_ne_u32 s[60:61], s48, v{T+1}
    s_or_b64 vcc, vcc, s[60:61]
    s_cbranch_vccz {L2}
    s_sub_u32 s66, s66, 1
    s_cmp_eq_u32 s66, 0
    s_cbranch_scc1 {L2}""")
    gather()
    e(f"s_waitcnt vmcnt(0)\ns_branch {L1}\n{L2}:")
    for o in (0, 2):
        e(f"v_add3_u32 v{T}, v{T}, v{T}, v{T}") if False else None
    for stp in (16, 8, 4):
        for b in range(0, stp, 4):
            for o in (0, 2):
                e(f"v_add_f32 v{GS+b+o}, v{GS+b+o}, v{GS+b+stp+o}")
    e(f"v_mov_b32 v{GS+1}, v{GS}\nv_mov_b32 v{GS+3}, v{GS+2}")
    e(f"v_and_b32 v{T+2}, 31, v1\nv_lshlrev_b32 v{T+2}, 3, v{T+2}")
    e(f"v_permlane32_swap_b32 v{GS}, v{GS+1}\nv_permlane32_swap_b32 v{GS+2}, v{GS+3}")
    e(f"s_lshl_b32 s6, s3, 8\ns_add_u32 s6, s6, {SCR+2304}")
    e(f"""v_add_f32 v{GS}, v{GS}, v{GS+1}
    v_add_f32 v{GS+2}, v{GS+2}, v{GS+3}
    v_mul_f32 v{GS}, 0x39e38e39, v{GS}
    v_mul_f32 v{GS+2}, 0x39e38e39, v{GS+2}
    v_fma_f32 v{GS+2}, -v{GS}, v{GS}, v{GS+2}
    v_add_f32 v{GS+2}, 0x3727c5ac, v{GS+2}
    v_rsq_f32 v{GS+2}, v{GS+2}
    v_add_u32 v{T+2}, s6, v{T+2}
    v_mul_f32 v{GS+3}, v{GS}, v{GS+2}
    v_lshrrev_b32 v{T+3}, 4, v1
    v_lshlrev_b32 v{T+3}, 6, v{T+3}
    v_add_u32 v{T+3}, s6, v{T+3}
    ds_write_b64 v{T+2}, v[{GS+2}:{GS+3}]""")
    RN = GS + 8
    for q in range(4):
        e(f"ds_read_b128 v[{RN+4*q}:{RN+4*q+3}], v{T+3} offset:{16*q}")
    e(f"s_lshl_b32 s6, s5, 6\ns_add_u32 s6, s6, s58\ns_mul_i32 s6, s6, 9216\ns_add_u32 s62, s6, {z2t[0]*1024}\ns_add_u32 s63, s62, 4096")
    e("s_waitcnt lgkmcnt(0)")
    for t in range(nt):
        p = PZ + 4 * t
        for q in range(4):
            e(f"v_lshlrev_b32 v{T+2*q}, 16, v{p+q}\nv_and_b32 v{T+2*q+1}, 0xffff0000, v{p+q}")
        for q in range(8):
            e(f"v_fma_f32 v{T+q}, v{T+q}, v{RN+2*q}, -v{RN+2*q+1}")
        for q in range(4):
            e(f"v_cvt_pk_bf16_f32 v{p+q}, v{T+2*q}, v{T+2*q+1}")
        e(f"buffer_store_dwordx4 v[{p}:{p+3}], v2, s[20:23], {'s62' if t < 4 else 's63'} offen offset:{(t%4)*1024}")
    if hf == 1:
        e("s_cmp_ge_u32 s67, 736\ns_cbranch_scc1 g1_end")
        e("s_mul_i32 s6, s67, 4608\ns_add_u32 s7, s6, 4096")
        for t in range(4):
            e(f"buffer_store_dwordx4 v[{B+4*t}:{B+4*t+3}], v2, s[72:75], s6 offen offset:{1024*t}")
        e("s_mov_b32 exec_lo, 0x00ff00ff\ns_mov_b32 exec_hi, 0x00ff00ff")
        e(f"buffer_store_dwordx4 v[{B+16}:{B+19}], v{U+2}, s[72:75], s7 offen")
    if stamp and hf == 0:
        e("s_waitcnt vmcnt(0)\ns_cmp_lg_u32 s3, 0\ns_cbranch_scc1 g1_end")
        st.end(16)
    e("s_endpgm")


if __name__ == "__main__":
    open("t_g1.s", "w").write(build([gen_g1(stamp=True)]))
```

```python
from common import *

BUF = 34816


def gen_g2(stamp=False, kidx=1, z1it=3, budget=62, attn=True, noreads=False, halfreads=False):
    k = Kern("g2_kernel", 256, 512, 4 * BUF, 256, sgpr=102)
    st = Stamps(k, stamp, kidx)
    e = k.e
    e("s_cmp_ge_u32 s2, 256\ns_cbranch_scc1 g2_end")
    st.begin()
    k.srd(8, "wsp"); k.srd(12, "ws"); k.srd(16, "ws"); k.srd(20, "ws"); k.srd(24, "bsp")
    e("v_lshrrev_b32 v1, 6, v0\nv_and_b32 v2, 63, v0")
    e("s_nop 0\nv_readfirstlane_b32 s3, v1")
    e("""s_and_b32 s4, s2, 1
    s_lshl_b32 s4, s4, 3
    s_bfe_u32 s6, s2, 0x30003
    s_add_u32 s4, s4, s6
    s_bfe_u32 s5, s2, 0x20001
    s_lshl_b32 s5, s5, 2
    s_lshr_b32 s6, s2, 6
    s_add_u32 s5, s5, s6""")
    e("s_cmp_ge_u32 s3, 4\ns_cbranch_scc1 g2_prod")
    ACC = 16
    S0 = 88
    S1 = 132
    Z1 = 176
    e("s_setprio 1")
    e("s_waitcnt lgkmcnt(0)")
    k.srd_fin(16, "ws", size=SZ_Z, off=OFF_Z1)
    k.srd_fin(20, "ws", size=SZ_Z, off=OFF_H)
    k.srd_fin(24, "bsp")
    e("""s_lshl_b32 s6, s4, 4
    s_add_u32 s6, s6, s5
    s_lshl_b32 s6, s6, 2
    s_add_u32 s6, s6, s3
    s_mul_i32 s6, s6, 9216
    v_lshlrev_b32 v3, 4, v2
    s_add_u32 s7, s6, 4096
    s_add_u32 s28, s6, 8192""")
    def z1loads():
        for ft in range(9):
            so = ["s6", "s7", "s28"][ft // 4]
            e(f"buffer_load_dwordx4 v[{Z1+4*ft}:{Z1+4*ft+3}], v3, s[16:19], {so} offen offset:{(ft%4)*1024}")
    if z1it is None:
        z1loads()
    e("""v_and_b32 v4, 15, v2
    v_lshrrev_b32 v5, 2, v4
    v_lshlrev_b32 v5, 3, v5
    v_and_b32 v6, 3, v4
    v_add_u32 v5, v5, v6
    v_lshlrev_b32 v5, 1, v5
    s_lshl_b32 s29, s4, 2
    s_add_u32 s29, s29, s3
    s_lshl_b32 s30, s29, 6""")
    e("buffer_load_ushort v14, v5, s[24:27], s30 offen")
    e("buffer_load_ushort v15, v5, s[24:27], s30 offen offset:8")
    e(f"""v_lshrrev_b32 v8, 2, v4
    v_lshlrev_b32 v9, 1, v8
    v_bfe_u32 v10, v4, 1, 1
    v_or_b32 v9, v9, v10
    v_lshrrev_b32 v10, 4, v2
    v_xor_b32 v9, v9, v10
    v_lshlrev_b32 v9, 4, v9
    v_lshlrev_b32 v8, 12, v8
    v_add_u32 v8, v8, v9
    v_and_b32 v9, 3, v4
    v_lshlrev_b32 v9, 7, v9
    v_add_u32 v8, v8, v9
    s_lshl_b32 s31, s3, 10
    s_add_u32 s31, s31, 18432
    v_add_u32 v8, s31, v8
    v_xor_b32 v9, 64, v8
    v_add_u32 v10, {2*BUF}, v8
    v_add_u32 v11, {2*BUF}, v9
    v_mov_b32 v6, v3
    v_add_u32 v7, {2*BUF}, v3""")
    for r in range(72):
        e(f"v_mov_b32 v{ACC+r}, 0")

    def reads(S, buf, kap):
        a = "v6" if buf < 2 else "v7"
        b = f"v{8 + kap + (0 if buf < 2 else 2)}"
        o = (buf & 1) * BUF
        L = [f"ds_read_b128 v[{S+4*j}:{S+4*j+3}], {b} offset:{o+512*j}" for j in range(2)]
        L += [f"ds_read_b128 v[{S+8+4*ft}:{S+8+4*ft+3}], {a} offset:{o+(kap*9+ft)*1024}" for ft in range(9)]
        return L

    def phase(S, R):
        m = []
        for ft in range(9):
            for j in range(2):
                c = ACC + 8 * ft + 4 * j
                m.append(f"v_mfma_f32_16x16x32_bf16 v[{c}:{c+3}], v[{S+8+4*ft}:{S+8+4*ft+3}], v[{S+4*j}:{S+4*j+3}], v[{c}:{c+3}]")
        if noreads:
            R = []
        if halfreads:
            R = R[:6]
        for i, x in enumerate(m):
            e(x)
            if i < len(R):
                e(R[i])

    e("s_barrier")
    st.mid(0)
    for x in reads(S0, 0, 0) + (reads(S1, 0, 1) if (noreads or halfreads) else []):
        e(x)
    e("s_mov_b32 s32, 8")
    e("g2_cloop:")
    if z1it is not None:
        e(f"s_cmp_lg_u32 s32, {z1it}\ns_cbranch_scc1 g2_noz1")
        z1loads()
        e("g2_noz1:")
    for b in range(4):
        e("s_waitcnt lgkmcnt(0)")
        phase(S0, reads(S1, b, 1))
        e("s_waitcnt lgkmcnt(0)\ns_barrier")
        phase(S1, reads(S0, (b + 1) % 4, 0))
    e("s_sub_u32 s32, s32, 1\ns_cmp_lg_u32 s32, 0\ns_cbranch_scc1 g2_cloop")
    st.mid(1)
    e("s_waitcnt vmcnt(0) lgkmcnt(0)")
    e("v_lshlrev_b32 v14, 16, v14\nv_lshlrev_b32 v15, 16, v15")
    e("""s_lshl_b32 s6, s29, 4
    s_add_u32 s6, s6, s5
    s_mul_i32 s6, s6, 9216
    s_add_u32 s7, s6, 4096
    s_add_u32 s28, s6, 8192
    s_nop 4""")
    T = S0
    O = S1
    for ft in range(9):
        for j in range(2):
            c = ACC + 8 * ft + 4 * j
            z = Z1 + 4 * ft + 2 * j
            t = T + 4 * ((2 * ft + j) % 4)
            e(f"v_lshlrev_b32 v{t}, 16, v{z}\nv_and_b32 v{t+1}, 0xffff0000, v{z}")
            e(f"v_lshlrev_b32 v{t+2}, 16, v{z+1}\nv_and_b32 v{t+3}, 0xffff0000, v{z+1}")
            for r in range(4):
                e(f"v_add_f32 v{c+r}, v{c+r}, v{14+j}")
            for r in range(4):
                e(f"v_mul_f32 v{c+r}, v{c+r}, v{t+r}")
            if ft < 8:
                d = O + 4 * (2 * (ft // 2) + j) + 2 * (ft & 1)
            else:
                d = O + 32 + 2 * j
            e(f"v_cvt_pk_bf16_f32 v{d}, v{c}, v{c+1}\nv_cvt_pk_bf16_f32 v{d+1}, v{c+2}, v{c+3}")
        if ft & 1 or ft == 8:
            sl = [2 * (ft // 2), 2 * (ft // 2) + 1] if ft < 8 else [8]
            for s in sl:
                so = ["s6", "s7", "s28"][s // 4]
                e(f"buffer_store_dwordx4 v[{O+4*s}:{O+4*s+3}], v3, s[20:23], {so} offen offset:{(s%4)*1024}")
    if stamp:
        e("s_waitcnt vmcnt(0)\ns_cmp_lg_u32 s3, 0\ns_cbranch_scc1 g2_end")
        st.end(16)
    e("s_endpgm")
    e("g2_prod:")
    e("s_sub_u32 s3, s3, 4")
    e("s_waitcnt lgkmcnt(0)")
    k.srd_fin(8, "wsp")
    k.srd_fin(12, "ws", size=SZ_Z, off=OFF_Z2N)
    e("""v_lshrrev_b32 v3, 3, v2
    v_lshlrev_b32 v3, 12, v3
    v_bfe_u32 v4, v2, 4, 1
    s_lshl_b32 s6, s3, 1
    v_or_b32 v4, s6, v4
    v_and_b32 v5, 7, v2
    v_xor_b32 v4, v4, v5
    v_lshlrev_b32 v4, 4, v4
    v_add_u32 v3, v3, v4
    s_lshl_b32 s6, s4, 4
    s_add_u32 s6, s6, s3
    s_lshl_b32 s6, s6, 15
    v_add_u32 v4, s6, v3""")
    for cw in range(1, 4):
        e(f"v_add_u32 v{4+cw}, {cw*(131072-1024)}, v4")
    e("""s_mul_i32 s33, s3, 4608
    v_lshlrev_b32 v0, 4, v2
    v_add_u32 v8, s33, v0""")
    e(f"s_mul_i32 s6, s5, {64*9216}\nv_add_u32 v8, s6, v8\nv_add_u32 v9, 4096, v8")
    e(f"s_lshl_b32 s34, s3, 12\ns_add_u32 s34, s34, 18432")
    vm = Trk(k, "vmcnt", 63)

    def issue(s):
        b = (s % 4) * BUF
        e(f"s_movk_i32 s37, {s*128}\ns_mov_b32 s36, {s*18432}")
        e(f"s_add_u32 m0, s34, {b}\ns_nop 0")
        for cw in range(4):
            e(f"buffer_load_dwordx4 v{4+cw}, s[8:11], s37 offen offset:{cw*1024} lds")
        e(f"s_add_u32 m0, s33, {b}\ns_nop 0")
        for p in range(4):
            e(f"buffer_load_dwordx4 v8, s[12:15], s36 offen offset:{p*1024} lds")
        e("s_add_u32 m0, m0, 4096\ns_mov_b32 exec_hi, 0")
        e(f"buffer_load_dwordx4 v9, s[12:15], s36 offen lds")
        e("s_mov_b32 exec_hi, -1")
        for _ in range(9):
            vm.issue(("dma", s))

    for s in range(3):
        issue(s)
    work = attention(k, vm) if attn else []

    def cost(x):
        if callable(x):
            return 0
        c = 0
        for ln in x.split("\n"):
            ln = ln.strip()
            c += 4 if ln.startswith("v_mfma") else 2 if ln.startswith(("v_exp", "v_rcp")) else 1 if ln.startswith(("v_", "buffer")) else 0
        return c

    for s in range(33):
        vm.wait(("dma", s))
        e("s_barrier")
        if s + 3 < 32:
            issue(s + 3)
        left = budget if s < 32 else 1 << 30
        while work and left > 0:
            x = work.pop(0)
            left -= cost(x)
            x() if callable(x) else e(x)
        if not work and attn and not hasattr(k, "done"):
            k.done = s
    e("s_endpgm")
    e("g2_end:\ns_endpgm")
    return k


def attention(k, vm):
    e = k.e
    MK, PK, OM, OT, KA, VA, TA, QA, S = 10, 18, 22, 26, 32, 104, 140, 176, 184
    TM = S + 4
    k.srd_fin(16, "ws", size=OFF_OT + SZ_OT - OFF_Q, off=OFF_Q)
    e(f"""s_and_b32 s6, s3, 1
    s_lshl_b32 s28, s5, 1
    s_add_u32 s28, s28, s6
    s_lshl_b32 s29, s4, 2
    s_and_b32 s6, s3, 2
    s_add_u32 s29, s29, s6
    v_mul_u32_u24 v1, 12, v2
    v_and_b32 v3, 15, v2
    v_lshlrev_b32 v3, 6, v3
    v_lshrrev_b32 v30, 4, v2
    v_lshl_add_u32 v3, v30, 4, v3
    s_lshl_b32 s6, s28, 6
    s_add_u32 s74, s6, s29
    s_mul_i32 s74, s74, 1536""")
    for u in range(10):
        e(f"s_add_i32 s38, s29, {u-8}\ns_max_i32 s39, s38, 0\ns_add_u32 s39, s39, s6\ns_mul_i32 s39, s39, 2688\ns_add_u32 s{40+u}, s39, {OFF_KV-OFF_Q}")

    def ldq(f):
        e(f"buffer_load_dwordx3 v[{QA+4*(f&1)}:{QA+4*(f&1)+2}], v1, s[16:19], s74 offen offset:{768*f}")
        vm.issue(('q', f))

    def ldk(u):
        for j in range(2):
            d = KA + 8 * (u % 9) + 4 * j
            e(f"buffer_load_dwordx3 v[{d}:{d+2}], v1, s[16:19], s{40+u} offen offset:{768*j}")
            vm.issue(('k', u))

    def ldv(u):
        d = VA + 4 * (u % 9)
        e(f"buffer_load_dwordx4 v[{d}:{d+3}], v0, s[16:19], s{40+u} offen offset:1536")
        vm.issue(('v', u))

    def ldt(us):
        e("s_mov_b32 exec_lo, 0x00030003\ns_mov_b32 exec_hi, 0x00030003")
        for u in us:
            d = TA + 4 * (u % 9)
            e(f"buffer_load_dwordx4 v[{d}:{d+3}], v3, s[16:19], s{40+u} offen offset:2560")
            vm.issue(('t', u))
        e("s_mov_b64 exec, -1")

    ldq(0); ldq(1)
    for u in range(9):
        ldk(u)
    for u in range(9):
        ldv(u)
    for r in range(36):
        e(f"v_mov_b32 v{TA+r}, 0x3f803f80")
    for f in range(2):
        e(f"v_mov_b32 v{QA+4*f+3}, 0x3f803f80")
    for u in range(9):
        if u < 8:
            e(f"s_add_i32 s38, s29, {u-8}\ns_cmp_lt_i32 s38, 0\ns_cselect_b32 s38, 0xf149f149, 0")
        for j in range(2):
            e(f"v_mov_b32 v{KA+8*u+4*j+3}, {'s38' if u < 8 else 0}")
    msk = {}
    for th in range(-4, 8):
        msk[th] = 50 + 2 * (th + 4)
        m = 0
        for l in range(64):
            if perm(0, l & 15) - 8 * (l >> 4) >= th:
                m |= 1 << l
        e(f"s_mov_b32 s{msk[th]}, {m & 0xffffffff:#x}\ns_mov_b32 s{msk[th]+1}, {m >> 32:#x}")
    e("v_mov_b32 v30, 0xffff\nv_mov_b32 v31, 0xffff0000")
    for jq in range(2):
        for jk in range(2):
            for rp in range(2):
                th = 4 * jk + 2 * rp - 4 * jq
                d = MK + 4 * jq + 2 * jk + rp
                e(f"v_cndmask_b32 v{d}, 0, v30, s[{msk[th]}:{msk[th]+1}]")
                e(f"v_cndmask_b32 v{PK}, 0, v31, s[{msk[th+1]}:{msk[th+1]+1}]")
                e(f"v_or_b32 v{d}, v{d}, v{PK}")
    e("s_mov_b32 s76, 0x3eae1a93")
    e(f"""s_lshl_b32 s6, s29, 5
    s_add_u32 s6, s6, s28
    s_lshl_b32 s6, s6, 10
    s_add_u32 s6, s6, {OFF_OM-OFF_Q}
    s_add_u32 s7, s6, 32768
    s_lshl_b32 s38, s29, 12
    s_lshr_b32 s39, s28, 4
    s_lshl_b32 s39, s39, 11
    s_add_u32 s38, s38, s39
    s_bfe_u32 s39, s28, 0x20002
    s_lshl_b32 s39, s39, 8
    s_add_u32 s38, s38, s39
    s_and_b32 s39, s28, 3
    s_lshl_b32 s39, s39, 2
    s_add_u32 s38, s38, s39
    s_add_u32 s38, s38, {OFF_OT-OFF_Q}
    s_add_u32 s39, s38, 4096""")
    L = [lambda: ldt(range(9))]
    s = S
    for n in range(4):
        gq, jq = n >> 1, n & 1
        L.append(lambda n=n: vm.wait(('q', n)))
        for up in range(9):
            u = gq + up
            L.append(lambda u=u: vm.wait(('k', u)))
            for jk in range(2):
                c = S + 8 * up + 4 * jk
                a = KA + 8 * (u % 9) + 4 * jk
                L.append(f"v_mfma_f32_16x16x32_bf16 v[{c}:{c+3}], v[{a}:{a+3}], v[{QA+4*jq}:{QA+4*jq+3}], 0")
        L.append("s_nop 7")
        if n < 2:
            L.append(lambda n=n: ldq(n + 2))
        if n == 1:
            L.append(lambda: ldk(9))
            L.append(f"v_mov_b32 v{KA+3}, 0\nv_mov_b32 v{KA+7}, 0")
        for jk in range(2):
            for r in range(4):
                m = msk[4 * jk + r - 4 * jq]
                L.append(f"v_cndmask_b32 v{s+64+4*jk+r}, v{s+4*jk+r}, v{s+64+4*jk+r}, s[{m}:{m+1}]")
        for c in range(4):
            b = s + 8 + 16 * c
            L.append(f"v_max3_f32 v{TM+c}, v{b}, v{b+1}, v{b+2}")
        for i in range(3, 15, 2):
            for c in range(4):
                b = s + 8 + 16 * c
                L.append(f"v_max3_f32 v{TM+c}, v{TM+c}, v{b+i}, v{b+i+1}")
        L.append(f"v_max3_f32 v{TM}, v{TM}, v{s+8+15}, v{s+8+31}")
        L.append(f"v_max3_f32 v{TM+2}, v{TM+2}, v{s+8+47}, v{s+8+63}")
        L.append(f"v_max3_f32 v{TM}, v{TM}, v{TM+1}, v{TM+3}")
        L.append(f"v_max_f32 v{TM}, v{TM}, v{TM+2}")
        L.append(f"v_mov_b32 v{TM+1}, v{TM}\ns_nop 1\nv_permlane16_swap_b32 v{TM}, v{TM+1}")
        L.append(f"v_max_f32 v{TM}, v{TM}, v{TM+1}")
        L.append(f"v_mov_b32 v{TM+1}, v{TM}\ns_nop 1\nv_permlane32_swap_b32 v{TM}, v{TM+1}")
        L.append(f"v_max_f32 v{TM}, v{TM}, v{TM+1}")
        L.append(f"v_mul_f32 v{TM}, s76, v{TM}")
        for up in (8, 1, 2, 3, 4, 5, 6, 7):
            b = s + 8 * up
            L += [f"v_fma_f32 v{b+i}, v{b+i}, s76, -v{TM}" for i in range(8)]
            L += [f"v_exp_f32 v{b+i}, v{b+i}" for i in range(8)]
            L += [f"v_cvt_pk_bf16_f32 v{b+i}, v{b+2*i}, v{b+2*i+1}" for i in range(4)]
            if up == 8:
                L += [f"v_bfi_b32 v{s+i}, v{MK+4*jq+i}, 0, v{b+i}" for i in range(4)]
                L += [f"v_and_b32 v{b+i}, v{MK+4*jq+i}, v{b+i}" for i in range(4)]
        L.append("s_nop 1")
        for up in range(9):
            u = gq + up
            p = S + 8 * up
            L.append(lambda u=u: (vm.wait(('v', u)), vm.wait(('t', u))))
            for c, a in ((OM, VA), (OT, TA)):
                a += 4 * (u % 9)
                L.append(f"v_mfma_f32_16x16x32_bf16 v[{c}:{c+3}], v[{a}:{a+3}], v[{p}:{p+3}], {'0' if up == 0 else f'v[{c}:{c+3}]'}")
        L.append("s_nop 7\ns_nop 1")
        if n == 1:
            L.append(lambda: (ldv(9), ldt([9])))
        o, t = OM, OT
        L.append(f"v_rcp_f32 v{t+2}, v{t+2}\ns_nop 0")
        L += [f"v_mul_f32 v{o+r}, v{o+r}, v{t+2}" for r in range(4)]
        L += [f"v_mul_f32 v{t+r}, v{t+r}, v{t+2}" for r in range(2)]
        L += [f"v_cvt_pk_bf16_f32 v{PK+2*jq+h}, v{o+2*h}, v{o+2*h+1}" for h in range(2)]
        L += [f"v_cvt_pk_bf16_f32 v{30+jq}, v{t}, v{t+1}"]
        L.append(lambda gq=gq, jq=jq: (e(f"s_mov_b64 exec, 0xffff\nbuffer_store_dword v{30+jq}, v0, s[16:19], s{38+gq} offen offset:{1024*jq}\ns_mov_b64 exec, -1"), vm.issue()))
        if jq == 1:
            L.append(lambda gq=gq: (e(f"buffer_store_dwordx4 v[{PK}:{PK+3}], v0, s[16:19], s{6+gq} offen"), vm.issue()))
    return L


if __name__ == "__main__":
    k = gen_g2(stamp=True)
    print("attention done at stage", k.done)
    open("t_g2.s", "w").write(build([k]))
```

```python
import sys
from common import *
from g1 import gen_g1
from g2a import gen_g2
from g3 import gen_g3
def full(stamp=False):
    return build([gen_g1(stamp=stamp), gen_g2(stamp=stamp), gen_g3(stamp=stamp, kidx=2)])
if __name__ == "__main__":
    open(sys.argv[1] if len(sys.argv) > 1 else "cand.s", "w").write(full())
    open("t_all.s", "w").write(full(True))
```

```python
from asmlib import *

OFF_Z2R = 0x0000000
OFF_Z2N = 0x0A00000
OFF_Z1 = 0x1400000
OFF_H = 0x1E00000
OFF_ST = 0x2800000
OFF_Q = 0x2900000
OFF_KV = 0x2D00000
OFF_OM = 0x3300000
OFF_OT = 0x3500000
OFF_W3 = 0x3600000
SZ_Z = 16 * 64 * 9216
SZ_ST = 64 * 16 * 512
SZ_Q = 32 * 64 * 1536
SZ_KV = 32 * 64 * 2688
OFF_QKV = 0x3A00000
QKV_U = 5248
SZ_QKV = 32 * 64 * QKV_U
OFF_FLG = 0x2880000
SZ_FLG = 65536
SZ_OM = 64 * 32 * 1024
SZ_OT = 64 * 4 * 1024
SZ_W3 = 8 * 4 * 23 * 4608
STAMP_OFF = 96 << 20
STAMP_K = 2048 * 64


XCC = [0]


def perm(j, i):
    return 8 * (i >> 2) + 4 * j + (i & 3)


class Stamps:
    def __init__(self, k, on, kidx):
        self.k, self.on, self.kidx = k, on, kidx

    def begin(self):
        if not self.on:
            return
        k = self.k
        k.e("s_memrealtime s[84:85]\ns_memtime s[86:87]")
        for i in range(4):
            k.e(f"s_memtime s[{92+2*i}:{93+2*i}]")
        k.e(f"s_load_dwordx2 s[80:81], s[0:1], {KARG['ws']}")

    def mid(self, i):
        if self.on:
            self.k.e(f"s_memtime s[{92+2*i}:{93+2*i}]")

    def end(self, vt):
        if not self.on:
            return
        k = self.k
        k.e("s_memrealtime s[88:89]\ns_memtime s[90:91]\ns_waitcnt lgkmcnt(0)")
        if XCC[0]:
            k.e("s_getreg_b32 s98, hwreg(HW_REG_XCC_ID)\ns_getreg_b32 s99, hwreg(HW_REG_HW_ID)")
        k.srd_fin(80, "ws", size=STAMP_K, off=STAMP_OFF + self.kidx * STAMP_K)
        for i in range(16):
            k.e(f"v_mov_b32 v{vt+i}, s{84+i}")
        k.e(f"s_lshl_b32 vcc_lo, s2, 6\nv_mov_b32 v{vt+16}, vcc_lo")
        k.e("s_mov_b64 exec, 1")
        for q in range(4):
            k.e(f"buffer_store_dwordx4 v[{vt+4*q}:{vt+4*q+3}], v{vt+16}, s[80:83], 0 offen offset:{16*q}")
        k.e("s_mov_b64 exec, -1")


class Trk:
    def __init__(self, k, name, mx):
        self.k, self.name, self.mx, self.q = k, name, mx, []

    def issue(self, tag=None):
        self.q.append(tag)

    def pending(self, tag):
        return tag in self.q

    def wait(self, tag):
        if tag not in self.q:
            return
        last = len(self.q) - 1 - self.q[::-1].index(tag)
        n = min(len(self.q) - 1 - last, self.mx)
        self.k.e(f"s_waitcnt {self.name}({n})")
        self.q = self.q[len(self.q) - n:] if n else []

    def drain(self):
        self.k.e(f"s_waitcnt {self.name}(0)")
        self.q = []
```

```python
from common import *

STG = 18432
RING = 6
PARK = RING * STG
XST = 73728
SCR = 155648
LDS = SCR + 4608
X0, B0, B1, WIN, TMP = 16, 160, 200, 232, 248
LEAD = 4
XB = PARK
W3L = XB
NONCE = XB + 49152


def w3unit(k):
    e = k.e
    e("""s_lshl_b32 s67, s2, 2
    s_add_u32 s67, s67, s44
    s_sub_u32 s64, s67, 512
    s_cmp_ge_u32 s67, 736
    s_cselect_b32 s64, s64, s67
    s_mul_i32 s62, s64, 2850
    s_lshr_b32 s62, s62, 16
    s_mul_i32 s63, s62, 23
    s_sub_u32 s63, s64, s63
    s_lshr_b32 s64, s62, 2
    s_and_b32 s62, s62, 3
    s_sub_u32 s49, s63, 1
    s_lshr_b32 s65, s49, 2
    s_mul_i32 s65, s65, 144
    s_and_b32 s49, s49, 3
    s_lshl_b32 s49, s49, 5
    s_add_u32 s49, s49, s65
    s_mul_i32 s65, s62, 576
    s_add_u32 s49, s49, s65
    s_mov_b32 s51, 16
    s_mov_b32 s59, 4
    s_sub_u32 s66, s63, 17
    s_mul_i32 s66, s66, 288
    s_add_u32 s66, s66, s65
    s_add_u32 s66, s66, 128
    s_cmp_ge_u32 s63, 17
    s_cselect_b32 s49, s66, s49
    s_cselect_b32 s51, 144, s51
    s_sub_u32 s66, s63, 19
    s_mul_i32 s66, s66, 36
    s_mul_i32 s65, s62, 144
    s_add_u32 s66, s66, s65
    s_cmp_ge_u32 s63, 19
    s_cselect_b32 s49, s66, s49
    s_cselect_b32 s51, 20, s51
    s_cselect_b32 s65, 1, 0
    s_and_b32 s66, s62, 1
    s_mul_i32 s66, s66, 288
    s_add_u32 s66, s66, 16
    s_cmp_eq_u32 s63, 0
    s_cselect_b32 s49, s66, s49
    s_cselect_b32 s51, 36, s51
    s_cselect_b32 s59, 72, s59
    s_cselect_b32 s65, 1, s65
    s_mov_b32 s100, s65""")
    e("s_mul_i32 s49, s49, 1152\ns_mul_i32 s66, s64, 144\ns_add_u32 s49, s49, s66")
    e("s_mul_i32 s51, s51, 1152\ns_mul_i32 s59, s59, 1152")


def xloads(k):
    e = k.e
    e("""s_lshl_b32 s6, s4, 4
    s_and_b32 s7, s3, 6
    s_lshl_b32 s7, s7, 1
    s_add_u32 s6, s6, s7
    s_and_b32 s7, s3, 1
    s_add_u32 s6, s6, s7
    s_mul_i32 s6, s6, 9216
    s_add_u32 s7, s6, 4608
    s_waitcnt lgkmcnt(0)""")
    k.srd_fin(8, "x")
    for u in range(9):
        for h in range(2):
            d = X0 + 16 * u + 4 * h
            e(f"buffer_load_dwordx4 v[{d}:{d+3}], v0, s[8:11], s{6+h} offen offset:{u*128}")


def stouch(k):
    e = k.e
    for sb, key in ((12, 'win'), (68, 'wout'), (16, 'wqkv'), (60, 'wo'), (76, 'wsp')):
        e(f"s_mul_i32 s6, s3, {SIZES[key]//8}\ns_load_dword s101, s[{sb}:{sb+1}], s6")
    for q in range(3):
        e(f"s_lshl_b32 s6, s3, 21\ns_add_u32 s6, s6, {OFF_Z2N + q*(16<<20)}\ns_load_dword s101, s[20:21], s6")


def srds(k, hf):
    e = k.e
    k.srd_fin(12, "win"); k.srd_fin(16, "wqkv"); k.srd_fin(40, "dbg")
    for s in (24, 28, 32, 36, 72):
        e(f"s_mov_b64 s[{s}:{s+1}], s[20:21]")
    k.srd_fin(72, "ws", size=SZ_W3, off=OFF_W3)
    k.srd_fin(76, "wsp")
    if hf == 1:
        e("s_cmp_eq_u32 s100, 1\ns_cselect_b32 s68, s60, s68\ns_cselect_b32 s69, s61, s69")
        e(f"s_mov_b32 s70, {SIZES['wout']}\ns_cselect_b32 s70, {SIZES['wo']}, s70\ns_and_b32 s69, s69, 0xffff\ns_mov_b32 s71, 0x00020000")
    k.srd_fin(20, "ws", size=SZ_Z, off=OFF_Z2N)
    k.srd_fin(24, "ws", size=SZ_Z, off=OFF_Z1)
    k.srd_fin(28, "ws", size=SZ_Q, off=OFF_Q)
    k.srd_fin(32, "ws", size=SZ_KV, off=OFF_KV)
    k.srd_fin(36, "ws", size=SZ_ST, off=OFF_ST)


def gen_g1(stamp=False, kidx=0, rateA=(4, 3), rateB=(3, 4), nogelu=False, **opt):
    k = Kern("g1_kernel", 256, 512, LDS, 256, sgpr=102)
    st = Stamps(k, stamp, kidx)
    e = k.e
    e("s_cmp_ge_u32 s2, 256\ns_cbranch_scc1 g1_end")
    st.begin()
    k.srd(8, "x"); k.srd(12, "win"); k.srd(16, "wqkv"); k.srd(20, "ws"); k.srd(40, "dbg")
    k.srd(68, "wout"); k.srd(60, "wo"); k.srd(76, "wsp")
    e("s_memrealtime s[52:53]")
    e("v_lshrrev_b32 v2, 6, v0\nv_and_b32 v1, 63, v0")
    e("s_nop 0\nv_readfirstlane_b32 s3, v2")
    lr = opt.get('lr', 3)
    e(f"""s_and_b32 s4, s2, {(16 >> lr) - 1}
    s_lshl_b32 s4, s4, {lr}
    s_bfe_u32 s6, s2, {(lr << 16) | 3}
    s_add_u32 s4, s4, s6
    s_bfe_u32 s5, s2, {((lr - 1) << 16) | (4 - lr)}
    s_lshl_b32 s5, s5, {5 - lr}
    s_lshr_b32 s6, s2, {3 + lr}
    s_add_u32 s5, s5, s6""")
    e("""s_and_b32 s44, s3, 3
    v_lshlrev_b32 v2, 4, v1
    v_lshrrev_b32 v0, 4, v1
    v_and_b32 v4, 8, v1
    v_lshl_or_b32 v0, v4, 1, v0
    v_mul_u32_u24 v0, 1152, v0
    v_and_b32 v4, 7, v1
    v_lshl_add_u32 v0, v4, 4, v0""")
    e("""s_mul_i32 s54, s5, 288
    s_add_u32 s55, s54, 4608
    s_mul_i32 s56, s5, 72
    s_and_b32 s57, s56, 15
    s_and_b32 s56, s56, 0xfffffff0
    s_mov_b32 s47, 0xbdd2d3e8
    s_mov_b32 s50, 0x3f803f80
    s_lshl_b32 s58, s4, 2
    s_add_u32 s58, s58, s44""")
    e("s_cmp_ge_u32 s3, 4\ns_cbranch_scc1 g1_pathB")
    info = {}
    LB = None
    saved = k.L
    bodies = {}
    for hf in (1, 0):
        k.L = []
        body(k, st, hf, info, rateA if hf == 0 else rateB, stamp, nogelu, opt)
        bodies[hf] = k.L
    k.L = saved + bodies[0] + ["g1_pathB:"] + bodies[1]
    e("g1_end:\ns_endpgm")
    return k


def body(k, st, hf, info, rate, stamp, nogelu, opt):
    e = k.e
    pf = opt.get('pf', -1)
    w3s = opt.get('w3s', 23)
    marks = opt.get('marks', ['p', 'm', 'x', 9])
    sw = opt.get('sw', 0)

    def mark(ev):
        if ev in marks:
            st.mid(marks.index(ev))
    vm = Trk(k, "vmcnt", 63)
    lg = Trk(k, "lgkmcnt", 15)

    def xl():
        mark('j')
        xloads(k)
        mark('l')
        for u in range(9):
            for h in range(2):
                vm.issue(("x", u))
    xf = opt.get('xf', 1) or hf == 0
    if xf:
        xl()
        if opt.get('stouch'):
            stouch(k)
    if hf == 1:
        w3unit(k)
    if xf:
        srds(k, hf)
    npc = 2 + hf
    if hf == 0:
        e("s_lshl_b32 s6, s44, 7")
    else:
        e("s_mul_i32 s6, s44, 160\ns_add_u32 s6, s6, 512")
    e("s_lshl_b32 s46, s6, 4")
    e(f"s_cmp_eq_u32 s5, {opt.get('q6', 7)}\ns_cselect_b32 s7, 5, {opt.get('q6d', 4)}")
    T = TMP
    for p in range(npc):
        e(f"""v_add_u32 v{T}, s6, v1
        v_add_u32 v{T}, {64*p}, v{T}
        v_mul_u32_u24 v{T+1}, 3641, v{T}
        v_lshrrev_b32 v{T+1}, 16, v{T+1}
        v_mul_u32_u24 v{T+2}, 18, v{T+1}
        v_sub_u32 v{T+2}, v{T}, v{T+2}
        v_and_b32 v{T+3}, 0x23, v{T+1}
        v_and_b32 v{T+4}, 12, v{T+1}
        v_lshl_or_b32 v{T+3}, v{T+4}, 1, v{T+3}
        v_and_b32 v{T+4}, 16, v{T+1}
        v_lshrrev_b32 v{T+4}, 2, v{T+4}
        v_or_b32 v{T+3}, v{T+3}, v{T+4}
        v_mul_u32_u24 v{7+p}, 9216, v{T+3}
        v_lshl_add_u32 v{7+p}, v{T+2}, 4, v{7+p}
        v_mul_u32_u24 v{10+p}, 3456, v{T+3}
        v_mul_u32_u24 v{T+4}, 43, v{T+2}
        v_lshrrev_b32 v{T+4}, 8, v{T+4}
        v_mul_u32_u24 v{T+5}, 6, v{T+4}
        v_sub_u32 v{T+5}, v{T+2}, v{T+5}
        v_min_u32 v{T+5}, s7, v{T+5}
        v_mul_u32_u24 v{T+4}, 1152, v{T+4}
        v_lshl_add_u32 v{T+4}, v{T+5}, 4, v{T+4}
        v_add_u32 v{10+p}, v{10+p}, v{T+4}""")
        if p:
            e(f"v_subrev_u32 v{7+p}, {1024*p}, v{7+p}\nv_subrev_u32 v{10+p}, {1024*p}, v{10+p}")

    def dma_setup(s):
        ps, q = divmod(s, 9)
        base, stride = [("s55", 589824), ("s54", 589824), ("s56", 221184)][ps]
        e(f"s_add_u32 s45, {base}, {q*stride}\ns_add_u32 m0, s46, {(s % RING)*STG}")

    def dma_piece(s, p):
        vo, srd = (7 + p, "s[12:15]") if s < 18 else (10 + p, "s[16:19]")
        if p == 2:
            e("s_mov_b32 exec_hi, 0")
        else:
            e("s_nop 0")
        if not (opt.get('x_nodma') and s >= LEAD):
            e(f"buffer_load_dwordx4 v{vo}, {srd}, s45 offen offset:{1024*p} lds")
            vm.issue(("dma", s))
        if p == 2:
            e("s_mov_b32 exec_hi, -1")

    F = B1 if hf == 0 else B0

    def wsp_pf(i=0, n=1):
        vm.wait('pf')
        e(f"s_lshl_b32 s100, s2, 3\ns_add_u32 s100, s100, s3\ns_lshl_b32 s100, s100, 12")
        if n > 1:
            m = ((1 << (64 // n)) - 1) << (i * 64 // n)
            e(f"s_mov_b32 exec_lo, {m & 0xffffffff}\ns_mov_b32 exec_hi, {m >> 32}")
        e("v_lshlrev_b32 v0, 6, v1")
        e(f"buffer_load_dword v0, v0, s[76:79], s100 offen"); vm.issue('pf')
        if n > 1:
            e("s_mov_b64 exec, -1")

    LR = opt.get('lr', 3)
    RW = 72 >> LR

    def lanes(n):
        e(f"s_mov_b32 exec_lo, {((1 << n) - 1) & 0xffffffff}\ns_mov_b32 exec_hi, {((1 << n) - 1) >> 32}")

    def win_pf(base):
        vm.wait('pf')
        e(f"""s_and_b32 s100, s4, {(1 << LR) - 1}
        s_lshl_b32 s100, s100, 3
        s_add_u32 s100, s100, s3
        s_mul_i32 s100, s100, {RW*9216}
        s_and_b32 s101, {base}, 0xffffff80
        s_add_u32 s100, s100, s101
        v_mul_u32_u24 v0, 43, v1
        v_lshrrev_b32 v0, 7, v0
        v_mul_u32_u24 v0, 8832, v0
        v_lshl_add_u32 v0, v1, 7, v0""")
        lanes(3 * RW)
        e("buffer_load_dword v0, v0, s[12:15], s100 offen\ns_mov_b64 exec, -1"); vm.issue('pf')

    def qkv_pf():
        vm.wait('pf')
        e(f"""s_and_b32 s100, s4, {(1 << LR) - 1}
        s_lshl_b32 s100, s100, 3
        s_add_u32 s100, s100, s3
        s_mul_i32 s100, s100, {3*RW*1152}
        s_add_u32 s100, s100, s56
        v_mul_u32_u24 v0, 1152, v1""")
        lanes(3 * RW)
        e("buffer_load_dword v15, v0, s[16:19], s100 offen"); vm.issue('pf')
        e("buffer_load_dword v0, v0, s[16:19], s100 offen offset:64\ns_mov_b64 exec, -1"); vm.issue('pf')

    def w3dma():
        U = WIN
        for p in range(5):
            e(f"""v_add_u32 v{U}, {64*p}, v1
            v_mul_u32_u24 v{U+1}, 7282, v{U}
            v_lshrrev_b32 v{U+1}, 16, v{U+1}
            v_mul_u32_u24 v{U+2}, 9, v{U+1}
            v_sub_u32 v{U+2}, v{U}, v{U+2}
            v_lshlrev_b32 v{U+2}, 4, v{U+2}
            v_and_b32 v{U}, 3, v{U+1}
            v_mul_u32_u24 v{U}, 1152, v{U}
            v_add_u32 v{U+2}, v{U+2}, v{U}
            v_bfe_u32 v{U}, v{U+1}, 2, 2
            v_mul_u32_u24 v{U}, s59, v{U}
            v_add_u32 v{U+2}, v{U+2}, v{U}
            v_bfe_u32 v{U}, v{U+1}, 4, 1
            v_mul_u32_u24 v{U}, s51, v{U}
            v_add_u32 v{F+12+4*p}, v{U+2}, v{U}""")

    def w3ld():
        for p in range(5):
            if p == 4:
                e("s_mov_b32 exec_hi, 0")
            e(f"buffer_load_dwordx4 v[{F+12+4*p}:{F+15+4*p}], v{F+12+4*p}, s[68:71], s49 offen"); vm.issue('w3')
        e("s_mov_b32 exec_hi, -1")

    def touch():
        e("s_mov_b64 exec, 1")
        e("s_lshl_b32 s6, s4, 4\ns_add_u32 s6, s6, s5\ns_lshl_b32 s6, s6, 2\ns_add_u32 s6, s6, s44\ns_mul_i32 s6, s6, 9216")
        e(f"buffer_load_dword v{F+12}, off, s[24:27], s6"); vm.issue()
        e("s_lshl_b32 s6, s5, 6\ns_add_u32 s6, s6, s58\ns_mul_i32 s6, s6, 9216")
        e(f"buffer_load_dword v{F+13}, off, s[20:23], s6"); vm.issue()
        e("s_lshl_b32 s6, s5, 7\ns_add_u32 s6, s6, s58\ns_mul_i32 s7, s6, 1536\ns_mul_i32 s6, s6, 2688")
        e(f"buffer_load_dword v{F+14}, off, s[28:31], s7"); vm.issue()
        e(f"buffer_load_dword v{F+15}, off, s[32:35], s6"); vm.issue()
        e("s_lshl_b32 s6, s58, 13\ns_mul_i32 s7, s67, 4608")
        e(f"buffer_load_dword v{F+16}, off, s[36:39], s6"); vm.issue()
        e(f"buffer_load_dword v{F+17}, off, s[72:75], s7"); vm.issue()
        e("s_mov_b64 exec, -1")

    def dma_stage(s):
        dma_setup(s)
        for p in range(npc):
            dma_piece(s, p)

    if opt.get('p1'):
        win_pf('s55')
    dpos = opt.get('dpos', ((8, 8, 8, 8), (-1, -1, 4, 8)))[hf]
    NUP = opt.get('nup', 5)
    if hf == 1 and w3s:
        w3dma()
    e(f"""v_lshrrev_b32 v{T}, 4, v1
    v_and_b32 v{T+1}, 7, v1
    v_and_or_b32 v{T+2}, v1, 8, v{T}
    s_and_b32 s6, s3, 1
    s_lshl_b32 s6, s6, 2
    v_or_b32 v{T+2}, s6, v{T+2}
    v_xor_b32 v{T+2}, v{T+2}, v{T+1}
    v_lshlrev_b32 v{T+2}, 4, v{T+2}
    v_lshl_add_u32 v{T+2}, v{T+1}, 8, v{T+2}
    s_lshr_b32 s6, s3, 1
    s_lshl_b32 s6, s6, 12
    s_add_u32 s6, s6, {XB}
    v_add_u32 v{F}, s6, v{T+2}
    v_subrev_u32 v{F+1}, {2*STG}, v{F}
    v_lshrrev_b32 v{T}, 4, v1
    v_and_b32 v{T+1}, 15, v1
    v_xor_b32 v{T+1}, v{T+1}, v{T}
    v_lshlrev_b32 v{T+1}, 4, v{T+1}
    v_lshl_add_u32 v{T+1}, v{T}, 8, v{T+1}
    s_lshl_b32 s6, s44, 12
    s_add_u32 s6, s6, {XB}
    v_add_u32 v{F+2}, s6, v{T+1}
    v_xor_b32 v{F+3}, 64, v{F+2}
    v_subrev_u32 v{F+5}, {2*STG}, v{F+2}
    v_subrev_u32 v{F+7}, {2*STG}, v{F+3}
    v_lshrrev_b32 v{T}, 2, v1
    v_mul_u32_u24 v{T}, 288, v{T}
    v_and_b32 v{T+1}, 3, v1
    v_lshl_add_u32 v3, v{T+1}, 3, v{T}
    v_add_u32 v4, {3*STG}, v3
    s_add_u32 s6, s57, {32 if hf == 0 else 224}
    v_add_u32 v5, s6, v{T}""")
    if hf == 0:
        e(f"v_and_b32 v{T+1}, 1, v1\nv_mul_u32_u24 v{T+1}, 96, v{T+1}\nv_add_u32 v5, v5, v{T+1}")
    e(f"""v_add_u32 v6, {3*STG}, v5
    s_mul_i32 s6, s44, 9216
    s_add_u32 s6, s6, {PARK + hf*5120}
    v_lshlrev_b32 v13, 2, v1
    v_add_u32 v13, s6, v13""")
    WU, WB = F + 32, F + 12
    if hf == 1 and w3s:
        U = WU
        e(f"""v_lshrrev_b32 v{U}, 2, v1
        v_mul_u32_u24 v{U}, 144, v{U}
        s_mul_i32 s6, s44, 4608
        s_add_u32 s6, s6, {W3L}
        v_add_u32 v{U}, s6, v{U}
        v_and_b32 v{U+1}, 1, v1
        v_lshl_add_u32 v{U+1}, v{U+1}, 3, v{U}
        v_and_b32 v{U+2}, 3, v1
        v_lshl_add_u32 v{U}, v{U+2}, 4, v{U}
        v_lshrrev_b32 v{U+2}, 4, v1
        v_lshlrev_b32 v{U+2}, 3, v{U+2}
        v_and_b32 v{U+3}, 7, v1
        v_add_u32 v{U+2}, v{U+2}, v{U+3}
        v_lshlrev_b32 v{U+2}, 4, v{U+2}""")
    if not xf:
        e("s_waitcnt lgkmcnt(0)")
        srds(k, hf)
        xl()
    for s in range(LEAD):
        if dpos[s] == -1:
            dma_stage(s)
    mark('i')
    S, Q = WIN + 12, WIN + 14
    for u in range(9):
        vm.wait(("x", u))
        mark(('x', u))
        for d in range(4):
            for h in range(2):
                r = X0 + 16 * u + 4 * h + d
                first = (u == 0 and d == 0)
                e(f"v_dot2_f32_bf16 v{S+h}, v{r}, s50, {0 if first else f'v{S+h}'}")
                e(f"v_dot2_f32_bf16 v{Q+h}, v{r}, v{r}, {0 if first else f'v{Q+h}'}")
        for s in range(LEAD):
            if dpos[s] == u:
                dma_stage(s)
    mark('x')
    if pf == -1:
        wsp_pf()
    e("s_nop 2")
    for ctl in ("quad_perm:[1,0,3,2]", "quad_perm:[2,3,0,1]", "row_half_mirror"):
        for r in range(4):
            e(f"v_add_f32_dpp v{S+r}, v{S+r}, v{S+r} {ctl} row_mask:0xf bank_mask:0xf")
    R = F + 4
    for h in range(2):
        e(f"v_mul_f32 v{S+h}, 0x3ae38e39, v{S+h}")
        e(f"v_mul_f32 v{Q+h}, 0x3ae38e39, v{Q+h}")
    for h in range(2):
        e(f"v_fma_f32 v{Q+h}, -v{S+h}, v{S+h}, v{Q+h}")
    for h in range(2):
        e(f"v_add_f32 v{Q+h}, 0x3727c5ac, v{Q+h}")
    for h in range(2):
        e(f"v_rsq_f32 v{R+4*h}, v{Q+h}")
    e("s_nop 0")
    for h in range(2):
        e(f"v_mul_f32 v{R+4*h+2}, v{S+h}, v{R+4*h}")

    def norm(h, u, pk):
        a = X0 + 16 * u + 4 * h
        L = []
        for d in range(4):
            L += [f"v_lshlrev_b32 v{T+2*d}, 16, v{a+d}", f"v_and_b32 v{T+2*d+1}, 0xffff0000, v{a+d}"]
        for d in range(4):
            if pk:
                L.append(f"v_pk_fma_f32 v[{T+2*d}:{T+2*d+1}], v[{T+2*d}:{T+2*d+1}], v[{R+4*h}:{R+4*h+1}], v[{R+4*h+2}:{R+4*h+3}] op_sel_hi:[1,0,0] neg_lo:[0,0,1] neg_hi:[0,0,1]")
            else:
                L += [f"v_fma_f32 v{T+2*d+q}, v{T+2*d+q}, v{R+4*h}, -v{R+4*h+2}" for q in range(2)]
        for d in range(4):
            L.append(f"v_cvt_pk_bf16_f32 v{a+d}, v{T+2*d}, v{T+2*d+1}")
        if opt.get('x_nonorm') and not pk:
            return [lambda: None] * len(L)
        return L

    xdone = set()

    def xw(h, u):
        a = X0 + 16 * u + 4 * h
        if not opt.get('x_nods'):
            ad, o = (F + 1, u * STG) if u < 2 else (F, (u % 3) * 16384)
            e(f"ds_write_b128 v{ad}, v[{a}:{a+3}] offset:{o+2048*h}")
            lg.issue(('xw', u))
        xdone.add((u, h))

    def xr(t, j):
        d = X0 + 8 * t + 4 * j
        if opt.get('x_nord'):
            return
        u = t >> 1
        ad, o = (F + 5 + 2 * (t & 1), u * STG) if u < 2 else (F + 2 + (t & 1), (u % 3) * 16384)
        e(f"ds_read_b128 v[{d}:{d+3}], v{ad} offset:{o+j*2048+(t&1)*1024}")
        lg.issue(('xr', t))

    if opt.get('stouch'):
        e("s_waitcnt lgkmcnt(0)")
    for u in range(NUP):
        for h in range(2):
            for i in norm(h, u, True):
                e(i)
            xw(h, u)
        for s in range(LEAD):
            if dpos[s] == 9 + u:
                dma_stage(s)
    mark('p')

    if hf == 0:
        P = [[(32*t, 0, B0 + 8*t, 'N') for t in range(5)],
             [(32*t, 0, B1 + 8*t, 'T') for t in range(4)],
             [(0, 0, B0, 'T'), (40, 0, B0+8, 'T'), (96, 0, B0+16, 'T'), (136, 0, B0+24, 'T'), (0, 1, B0+32, 'T')]]
        z2t, z1t = list(range(5)), list(range(4))
        BZ2, BZ1 = B0, B1
    else:
        P = [[(32*(5+t), 0, B1 + 8*t, 'N') for t in range(4)],
             [(32*(4+t), 0, B0 + 8*t, 'T') for t in range(5)],
             [(192, 0, B1, 'N'), (232, 0, B1+8, 'N'), (0, 1, B1+16, 'N')]]
        z2t, z1t = list(range(5, 9)), list(range(4, 9))
        BZ2, BZ1 = B1, B0
    frags = [(s, kk, ti) for s in range(27) for kk in range(2) for ti in range(len(P[s // 9]))]
    NF = len(frags)
    cur = dict(stage=-1)
    timed = {}

    def rd(n):
        s, kk, ti = frags[n]
        if kk == 0 and ti == 0:
            vm.wait(("dma", s))
            if s < 8:
                assert (s + 1, 0) in xdone and (s + 1, 1) in xdone, (hf, s)
                lg.wait(('xw', s + 1))
            if 0 < s < 9:
                lg.wait(('xr', 2 * s + 1))
            if s == 9:
                lg.wait('w3r')
            if not (opt.get('x_nobar') and s % 9 > 0):
                e("s_barrier")
            cur['stage'] = s
            mark(s)
            if s == 0:
                xr(0, 0); xr(0, 1)
            if s < 8:
                for q in range(4):
                    timed.setdefault(max(0, n - 3) + 1 + q + hf * 0, []).append(lambda q=q, s=s: xr(2 * s + 2 + q // 2, q & 1))
            if 'bw' in info and hf == 1 and 'bvis' not in info and not lg.pending('bw'):
                info['bvis'] = s
            if s == 18:
                e("v_add_u32 v3, s57, v3\nv_add_u32 v4, s57, v4")
            for q, sd in enumerate({0: [], 1: [4, 5]}.get(s, [s + LEAD])):
                for p in range(npc if sd < 27 else 0):
                    def f(p=p, sd=sd):
                        if p == 0:
                            dma_setup(sd)
                        dma_piece(sd, p)
                    timed.setdefault(n - 2 + (npc * q + p if s == 1 else 2 * p), []).append(f)
        col, kind, _, _ = P[s // 9][ti]
        b = s % RING
        a = (3 if kind == 0 else 5) + (1 if b >= 3 else 0)
        o = (b % 3) * STG + kk * 32 * 288 + col
        w = WIN + 4 * (n % 4)
        e(f"ds_read_b64_tr_b16 v[{w}:{w+1}], v{a} offset:{o}")
        e(f"ds_read_b64_tr_b16 v[{w+2}:{w+3}], v{a} offset:{o+16*288}")
        lg.issue(None); lg.issue(("f", n))
        if n == 2:
            xr(1, 0); xr(1, 1)

    fill = []

    def gelu4(acc):
        n = len(acc)
        L = []
        L += [f"v_fmaak_f32 v{T+i}, v{a}, v{a}, 0x41b2e92f" for i, a in enumerate(acc)]
        L += [f"v_mul_f32 v{T+4+i}, s47, v{a}" for i, a in enumerate(acc)]
        L += [f"v_mul_f32 v{T+i}, v{T+i}, v{T+4+i}" for i in range(n)]
        L += [f"v_exp_f32 v{T+i}, v{T+i}" for i in range(n)]
        L += [f"v_add_f32 v{T+i}, 1.0, v{T+i}" for i in range(n)]
        L += [f"v_rcp_f32 v{T+i}, v{T+i}" for i in range(n)]
        L += [f"v_mul_f32 v{T+4+i}, v{a}, v{T+i}" for i, a in enumerate(acc)]
        return L

    def dsop(txt, tag=None):
        def f():
            e(txt); lg.issue(tag)
        return f

    def vmop(txt, tag=None):
        def f():
            e(txt); vm.issue(tag)
        return f

    def z2fill():
        L = []
        nt = len(z2t)
        for j in range(2):
            for rp in range(2):
                for p0 in range(0, nt, 2):
                    tl = [t for t in (p0, p0 + 1) if t < nt]
                    acc = [BZ2 + 8*t + 4*j + 2*rp + r for t in tl for r in range(2)]
                    L += gelu4(acc)
                    for i, t in enumerate(tl):
                        L.append(f"v_cvt_pk_bf16_f32 v{T+2*i}, v{T+4+2*i}, v{T+5+2*i}")
                    for r in range(2):
                        sS = BZ2 + 4*j + 2*rp + r
                        sQ = sS + 8
                        if p0 == 0:
                            L += [f"v_add_f32 v{sS}, v{T+4+r}, v{T+6+r}", f"v_mul_f32 v{sQ}, v{T+4+r}, v{T+4+r}"]
                        else:
                            L += [f"v_add_f32 v{sS}, v{sS}, v{T+4+r}", f"v_fmac_f32 v{sQ}, v{T+4+r}, v{T+4+r}"]
                    for i, t in enumerate(tl):
                        L.append(dsop(f"ds_write_b32 v13, v{T+2*i} offset:{(t*4 + 2*j + rp)*256}"))
                    if len(tl) == 2:
                        for r in range(2):
                            sS = BZ2 + 4*j + 2*rp + r
                            sQ = sS + 8
                            if p0:
                                L.append(f"v_add_f32 v{sS}, v{sS}, v{T+6+r}")
                            L.append(f"v_fmac_f32 v{sQ}, v{T+6+r}, v{T+6+r}")
        L.append("s_nop 1")
        for bm, src in (("0x3", 0), ("0xc", 4)):
            for q in range(2):
                for r in range(4):
                    a = BZ2 + 8*q + r
                    L.append(f"v_add_f32_dpp v{a}, v{a+src}, v{a+src} row_mirror row_mask:0xf bank_mask:{bm}")
        for bm, src in (("0x5", 0), ("0xa", 2)):
            for q in range(2):
                for r in range(2):
                    a = BZ2 + 8*q + r
                    L.append(f"v_add_f32_dpp v{a}, v{a+src}, v{a+src} row_half_mirror row_mask:0xf bank_mask:{bm}")
        for ctl in ("quad_perm:[1,0,3,2]", "quad_perm:[2,3,0,1]"):
            for q in range(2):
                for r in range(2):
                    a = BZ2 + 8*q + r
                    L.append(f"v_add_f32_dpp v{a}, v{a}, v{a} {ctl} row_mask:0xf bank_mask:0xf")
        L.append("s_mov_b32 s60, 0xaaaaaaaa\ns_mov_b32 s61, 0xaaaaaaaa")
        L.append(f"s_lshl_b32 s6, s44, 9\ns_add_u32 s6, s6, {SCR+256}")
        L.append(f"v_lshlrev_b32 v{T+7}, 3, v1")
        L.append(f"v_add_u32 v{T+7}, s6, v{T+7}")
        if hf == 1:
            L.append(f"v_cndmask_b32 v{T}, v{BZ2}, v{BZ2+1}, s[60:61]")
            L.append(f"v_cndmask_b32 v{T+1}, v{BZ2+8}, v{BZ2+9}, s[60:61]")
            def f():
                e(f"ds_write_b64 v{T+7}, v[{T}:{T+1}]"); lg.issue('bw'); info['bw'] = True
            L.append(f)
        else:
            L.append(f"v_cndmask_b32 v{T}, v{BZ2}, v{BZ2+1}, s[60:61]")
            L.append(f"v_cndmask_b32 v{T+2}, v{BZ2+8}, v{BZ2+9}, s[60:61]")
            L.append(("hold", info['bvis']))
            L.append(dsop(f"ds_read_b64 v[{T+4}:{T+5}], v{T+7}", 'br'))
            L.append(f"v_lshrrev_b32 v{T+6}, 2, v1")
            L.append(f"v_and_b32 v{T+7}, 1, v1")
            L.append(f"v_lshl_or_b32 v{T+6}, v{T+6}, 1, v{T+7}")
            L.append(f"v_lshlrev_b32 v{T+6}, 4, v{T+6}")
            L.append(f"v_mov_b32 v{T+1}, s48")
            L.append(f"v_mov_b32 v{T+3}, s48")
            L.append("s_lshl_b32 s6, s58, 4\ns_add_u32 s6, s6, s5\ns_lshl_b32 s6, s6, 9")
            L.append(("skip", 4))
            L.append(lambda: lg.wait('br'))
            L.append(f"v_add_f32 v{T}, v{T}, v{T+4}")
            L.append(f"v_add_f32 v{T+2}, v{T+2}, v{T+5}")
            L.append(vmop(f"s_mov_b32 exec_lo, 0x33333333\ns_mov_b32 exec_hi, 0x33333333\n"
                          f"buffer_store_dwordx4 v[{T}:{T+3}], v{T+6}, s[36:39], s6 offen sc1\ns_mov_b64 exec, -1\ns_nop 0"))
        return L

    def z1fill():
        L = []
        L.append(f"s_lshl_b32 s6, s4, 4\ns_add_u32 s6, s6, s5\ns_lshl_b32 s6, s6, 2\ns_add_u32 s6, s6, s44\n"
                 f"s_mul_i32 s6, s6, 9216\ns_add_u32 s62, s6, {z1t[0]*1024}\ns_add_u32 s63, s62, 4096")
        for i, t in enumerate(z1t):
            b = BZ1 + 8 * i
            for j in range(2):
                L += gelu4([b + 4*j + r for r in range(4)])
                L.append(f"v_cvt_pk_bf16_f32 v{b+2*j}, v{T+4}, v{T+5}")
                L.append(f"v_cvt_pk_bf16_f32 v{b+2*j+1}, v{T+6}, v{T+7}")
            if not opt.get('nost'):
                L.append(vmop(f"buffer_store_dwordx4 v[{b}:{b+3}], v2, s[24:27], {'s62' if i < 4 else 's63'} offen offset:{(i%4)*1024}"))
        return L

    skip = [0]

    def pump(n):
        while n > 0 and fill:
            if skip[0] > 0:
                skip[0] -= 1
                return
            it = fill[0]
            if isinstance(it, tuple):
                if it[0] == "hold":
                    if cur['stage'] < it[1]:
                        return
                    fill.pop(0)
                    continue
                skip[0] = it[1]
                fill.pop(0)
                continue
            fill.pop(0)
            it() if callable(it) else e(it)
            n -= 1

    def flush():
        skip[0] = 0
        while fill:
            assert not (isinstance(fill[0], tuple) and fill[0][0] == "hold" and cur['stage'] < fill[0][1])
            skip[0] = 0
            pump(1000)

    GS = X0

    def gather():
        e("s_lshl_b32 s6, s58, 13\ns_add_u32 s7, s6, 4096")
        for q in range(8):
            e(f"buffer_load_dwordx4 v[{GS+4*q}:{GS+4*q+3}], v2, s[36:39], s{6+q//4} offen offset:{(q%4)*1024} sc1")
            vm.issue('gs')

    PZ = X0 + 32
    zn = opt.get('zn', 0)

    def pzreads():
        return [dsop(f"ds_read2st64_b32 v[{PZ+4*t+2*q}:{PZ+4*t+2*q+1}], v13 offset0:{t*4+2*q} offset1:{t*4+2*q+1}", 'pz')
                for t in range(len(z2t)) for q in range(2)]

    def znfill():
        L = []
        def chk():
            vm.wait('gs')
            e(f"s_mov_b32 s66, {2 if nogelu else 4096}")
            L1, L2 = f"g1_chk{hf}", f"g1_ok{hf}"
            e(f"{L1}:")
            tags = [GS + 2 * i + 1 for i in range(16)]
            for op, d in (("min", T), ("max", T + 1)):
                e(f"v_{op}3_u32 v{d}, v{tags[0]}, v{tags[1]}, v{tags[2]}")
                for i in range(3, 15, 2):
                    e(f"v_{op}3_u32 v{d}, v{d}, v{tags[i]}, v{tags[i+1]}")
                e(f"v_{op}_u32 v{d}, v{d}, v{tags[15]}")
            e(f"""v_cmp_ne_u32 vcc, s48, v{T}
            v_cmp_ne_u32 s[60:61], s48, v{T+1}
            s_or_b64 vcc, vcc, s[60:61]
            s_cbranch_vccz {L2}
            s_sub_u32 s66, s66, 1
            s_cmp_eq_u32 s66, 0
            s_cbranch_scc1 {L2}""")
            q0 = list(vm.q)
            gather()
            vm.q = q0
            e(f"s_waitcnt vmcnt(0)\ns_branch {L1}\n{L2}:")
        L.append(chk)
        for stp in (16, 8, 4):
            for b in range(0, stp, 4):
                for o in (0, 2):
                    L.append(f"v_add_f32 v{GS+b+o}, v{GS+b+o}, v{GS+b+stp+o}")
        L += f"""v_mov_b32 v{GS+1}, v{GS}
        v_mov_b32 v{GS+3}, v{GS+2}
        v_and_b32 v{T+2}, 31, v1
        v_lshlrev_b32 v{T+2}, 3, v{T+2}
        v_permlane32_swap_b32 v{GS}, v{GS+1}
        v_permlane32_swap_b32 v{GS+2}, v{GS+3}
        s_lshl_b32 s60, s3, 8
        s_add_u32 s60, s60, {SCR+2304}
        v_add_f32 v{GS}, v{GS}, v{GS+1}
        v_add_f32 v{GS+2}, v{GS+2}, v{GS+3}
        v_mul_f32 v{GS}, 0x39e38e39, v{GS}
        v_mul_f32 v{GS+2}, 0x39e38e39, v{GS+2}
        v_fma_f32 v{GS+2}, -v{GS}, v{GS}, v{GS+2}
        v_add_f32 v{GS+2}, 0x3727c5ac, v{GS+2}
        v_rsq_f32 v{GS+2}, v{GS+2}
        v_add_u32 v{T+2}, s60, v{T+2}
        v_mul_f32 v{GS+3}, v{GS}, v{GS+2}
        v_lshrrev_b32 v{T+3}, 4, v1
        v_lshlrev_b32 v{T+3}, 6, v{T+3}
        v_add_u32 v{T+3}, s60, v{T+3}""".split("\n")
        L.append(dsop(f"ds_write_b64 v{T+2}, v[{GS+2}:{GS+3}]"))
        RN = GS + 8
        for q in range(4):
            L.append(dsop(f"ds_read_b128 v[{RN+4*q}:{RN+4*q+3}], v{T+3} offset:{16*q}", 'rn'))
        L.append(f"s_lshl_b32 s60, s5, 6\ns_add_u32 s60, s60, s58\ns_mul_i32 s60, s60, 9216\ns_add_u32 s62, s60, {z2t[0]*1024}\ns_add_u32 s63, s62, 4096")
        L.append(("skip", 3))
        L.append(lambda: lg.wait('rn'))
        for t in range(len(z2t)):
            p = PZ + 4 * t
            for q in range(4):
                L += [f"v_lshlrev_b32 v{T+2*q}, 16, v{p+q}", f"v_and_b32 v{T+2*q+1}, 0xffff0000, v{p+q}"]
            for q in range(8):
                L.append(f"v_fma_f32 v{T+q}, v{T+q}, v{RN+2*q}, -v{RN+2*q+1}")
            for q in range(4):
                L.append(f"v_cvt_pk_bf16_f32 v{p+q}, v{T+2*q}, v{T+2*q+1}")
            L.append(vmop(f"buffer_store_dwordx4 v[{p}:{p+3}], v2, s[20:23], {'s62' if t < 4 else 's63'} offen offset:{(t%4)*1024}"))
        return L

    for u in range(NUP, 9):
        fill += norm(0, u, False) + [("hold", u - 3), lambda u=u: xw(0, u)] + norm(1, u, False) + [lambda u=u: xw(1, u)]
    if opt.get('prio'):
        e(f"s_setprio {opt['prio'][hf]}")
    for n in range(3):
        rd(n)
    if pf == -2:
        wsp_pf()
    if hf == 0:
        e("s_cmp_lg_u32 s3, 0\ns_cbranch_scc1 g1_nononce")
        e("""s_or_b32 s52, s52, 1
        s_lshl_b32 s6, s4, 4
        v_mov_b32 v14, s52
        v_mov_b32 v15, 0
        s_mov_b64 exec, 1
        buffer_atomic_cmpswap v[14:15], off, s[40:43], s6 sc0 sc1
        s_mov_b64 exec, -1
        g1_nononce:""")
    if hf == 1 and w3s and opt.get('w3p', -1) == -1:
        w3ld()
    for n in range(NF):
        s, kk, ti = frags[n]
        ps = s // 9
        if kk == 0 and ti == 0 and s % 9 == 0 and ps > 0:
            flush()
            if not nogelu:
                fill += [("skip", 4)] + (z2fill() if ps == 1 else z1fill())
                if ps == 2 and zn:
                    fill += [("hold", max(22, zn + opt.get('zd', 2)))] + pzreads() + znfill()
        if kk == 0 and ti == 0 and s == 5:
            if hf == 0:
                e(f"""s_cmp_lg_u32 s3, 0
                s_cbranch_scc1 g1_nn2
                v_readfirstlane_b32 s6, v14
                s_cmp_eq_u32 s6, 0
                s_cselect_b32 s6, s52, s6
                v_mov_b32 v14, s6
                v_mov_b32 v15, {NONCE}
                ds_write_b32 v15, v14
                s_waitcnt lgkmcnt(0)
                g1_nn2:""")
        if kk == 0 and ti == 0 and s == 7:
            e(f"v_mov_b32 v15, {NONCE}\nds_read_b32 v14, v15"); lg.issue('nonce')
        if kk == 0 and ti == 0 and s == 8:
            lg.wait('nonce')
            e("v_readfirstlane_b32 s48, v14")
        if kk == 0 and ti == 0 and s == (zn or 25):
            gather()
        if hf == 1 and w3s and (s, kk, ti) == (opt.get('w3p', -1), 1, 0):
            w3ld()
        if kk == 0 and ti == 1 and s == opt.get('p2'):
            win_pf('s54')
        if kk == 0 and ti == 1 and s == opt.get('p3'):
            assert s >= 9
            qkv_pf()
        if kk == 0 and ti == 1 and s == pf:
            wsp_pf()
        if kk == 0 and ti == 1 and isinstance(pf, tuple) and s - hf in pf:
            wsp_pf(pf.index(s - hf), len(pf))
        n8 = frags.index((8, 0, 0))
        if hf == 1 and w3s and n == n8 - 7:
            assert cur['stage'] >= 7
            vm.wait('w3')
            e(f"s_mul_i32 s6, s44, 4608\ns_add_u32 s6, s6, {W3L}\nv_add_u32 v{WU+3}, s6, v2")
        if hf == 1 and w3s and n8 - 7 <= n < n8 - 2:
            p = n - (n8 - 7)
            if p == 4:
                e("s_mov_b32 exec_hi, 0")
            e(f"ds_write_b128 v{WU+3}, v[{WB+4*p}:{WB+4*p+3}] offset:{1024*p}"); lg.issue()
            if p == 4:
                e("s_mov_b32 exec_hi, -1")
        if hf == 1 and w3s and n == n8:
            for t in range(4):
                for hh in range(2):
                    e(f"ds_read_b64_tr_b16 v[{WB+4*t+2*hh}:{WB+4*t+2*hh+1}], v{WU} offset:{hh*16*144 + 64*(t>>1) + 8*(t&1)}")
                    lg.issue('w3r')
            for hh in range(2):
                e(f"ds_read_b64_tr_b16 v[{WB+16+2*hh}:{WB+16+2*hh+1}], v{WU+1} offset:{hh*16*144 + 128}")
                lg.issue('w3r')
        if hf == 1 and w3s and n == n8 + 4:
            lg.wait('w3r')
            e("s_cmp_ge_u32 s67, 736\ns_cbranch_scc1 g1_now3")
            e("s_mul_i32 s6, s67, 4608\ns_add_u32 s7, s6, 4096")
            for t in range(4):
                e(f"buffer_store_dwordx4 v[{WB+4*t}:{WB+4*t+3}], v2, s[72:75], s6 offen offset:{1024*t}")
            e("s_mov_b32 exec_lo, 0x00ff00ff\ns_mov_b32 exec_hi, 0x00ff00ff")
            e(f"buffer_store_dwordx4 v[{WB+16}:{WB+19}], v{WU+2}, s[72:75], s7 offen")
            e("s_mov_b64 exec, -1\ng1_now3:")
        if ps == 0:
            lg.wait(('xr', 2 * s + kk))
        lg.wait(("f", n))
        _, _, acc, ori = P[ps][ti]
        t = (s % 9) * 2 + kk
        w = WIN + 4 * (n % 4)
        for j in range(2):
            x = X0 + 8 * t + 4 * j
            c = acc + 4 * j
            A, B = (x, w) if ori == 'N' else (w, x)
            src = "0" if t == 0 else f"v[{c}:{c+3}]"
            e(f"v_mfma_f32_16x16x32_bf16 v[{c}:{c+3}], v[{A}:{A+3}], v[{B}:{B+3}], {src}")
            if j == 0 and n + 3 < NF:
                pass
            pump(rate[ps - 1] if ps else opt.get('r0', ((1, 2), (2, 2)))[hf][j])
        if n + 3 < NF:
            rd(n + 3) if False else None
        for f in timed.pop(n, []):
            f()
        if n + 3 < NF:
            rd(n + 3)
    assert not timed, timed.keys()
    k.left = getattr(k, 'left', []) + [len(fill)]
    mark('m')
    flush()
    if not zn:
        for f in pzreads():
            f()
    e("s_nop 4")
    if hf == 0:
        e(f"v_mul_u32_u24 v{T+7}, 12, v1")
        e(f"s_lshl_b32 s6, s5, 7\ns_add_u32 s6, s6, s58\ns_mul_i32 s62, s6, 1536\ns_add_u32 s63, s62, {64*1536}")
        e(f"s_mul_i32 s64, s6, 2688\ns_add_u32 s65, s64, {64*2688}")
        e("s_mov_b32 s60, -1\ns_mov_b32 s61, 0")
        TT = B0 + 32
        for j in range(2):
            for hh in range(2):
                e(f"v_cvt_pk_bf16_f32 v{T+2*j+hh}, v{TT+4*j+2*hh}, v{TT+4*j+2*hh+1}")
        for ti in range(4):
            for j in range(2):
                c = B0 + 8 * ti + 4 * j
                e(f"v_cvt_pk_bf16_f32 v{c}, v{c}, v{c+1}\nv_cvt_pk_bf16_f32 v{c+1}, v{c+2}, v{c+3}")
                if ti >= 2:
                    e(f"v_mov_b32 v{c+2}, v{T+2*j+(ti&1)}")
                else:
                    e(f"v_mov_b32 v{c+2}, 0\nv_cndmask_b32 v{c+3}, 0, v{T+2*j+ti}, s[60:61]")
        for j in range(2):
            for ti in range(2):
                c = B0 + 8 * ti + 4 * j
                e(f"v_permlane16_swap_b32 v{c+2}, v{c+3}")
        for ti in (2, 3, 0, 1):
            for j in range(2):
                c = B0 + 8 * ti + 4 * j
                srd = "s[28:31]" if ti < 2 else "s[32:35]"
                e(f"buffer_store_dwordx3 v[{c}:{c+2}], v{T+7}, {srd}, s{62+ti} offen offset:{768*j}")
                vm.issue()
    else:
        e(f"s_lshl_b32 s6, s5, 7\ns_add_u32 s6, s6, s58\ns_mul_i32 s64, s6, 2688\ns_add_u32 s65, s64, {64*2688}")
        e(f"""v_bfe_u32 v{T+7}, v1, 1, 1
        v_mul_u32_u24 v{T+7}, {64*2688}, v{T+7}
        v_and_b32 v{T+6}, 1, v1
        v_lshl_add_u32 v{T+7}, v{T+6}, 6, v{T+7}
        v_lshrrev_b32 v{T+6}, 4, v1
        v_lshl_add_u32 v{T+7}, v{T+6}, 4, v{T+7}""")
        for ti in range(3):
            c = B1 + 8 * ti
            for q in range(4):
                e(f"v_cvt_pk_bf16_f32 v{c+q}, v{c+2*q}, v{c+2*q+1}")
        for ti in range(2):
            c = B1 + 8 * ti
            e(f"buffer_store_dwordx4 v[{c}:{c+3}], v2, s[32:35], s{64+ti} offen offset:1536")
            vm.issue()
        c = B1 + 16
        e("s_mov_b32 exec_lo, 0x000f000f\ns_mov_b32 exec_hi, 0x000f000f")
        e(f"buffer_store_dwordx4 v[{c}:{c+3}], v{T+7}, s[32:35], s64 offen offset:2560")
        vm.issue()
        e("s_mov_b64 exec, -1")
    if not zn:
        fill += znfill()
        flush()
    if stamp and hf == sw // 4:
        e(f"s_waitcnt vmcnt(0)\ns_cmp_lg_u32 s3, {sw}\ns_cbranch_scc1 g1_end")
        st.end(16)
    e("s_endpgm")


if __name__ == "__main__":
    open("t_g1.s", "w").write(build([gen_g1(stamp=True)]))
```

```python
from common import *

BUF = 34816


def gen_g2(stamp=False, kidx=1, z1it=3, budget=66, attn=True, noreads=False, halfreads=False, pprio=0, cprio=1, mc=4, D=8, P=4, z1s=None, al=0, srt=None, zpos=11, kps=3):
    k = Kern("g2_kernel", 256, 512, 4 * BUF, 256, sgpr=102)
    st = Stamps(k, stamp, kidx)
    e = k.e
    e("s_cmp_ge_u32 s2, 256\ns_cbranch_scc1 g2_end")
    st.begin()
    k.srd(8, "wsp"); k.srd(12, "ws"); k.srd(16, "ws"); k.srd(20, "ws"); k.srd(24, "bsp")
    e("v_lshrrev_b32 v1, 6, v0\nv_and_b32 v2, 63, v0")
    e("s_nop 0\nv_readfirstlane_b32 s3, v1")
    e("""s_and_b32 s4, s2, 1
    s_lshl_b32 s4, s4, 3
    s_bfe_u32 s6, s2, 0x30003
    s_add_u32 s4, s4, s6
    s_bfe_u32 s5, s2, 0x20001
    s_lshl_b32 s5, s5, 2
    s_lshr_b32 s6, s2, 6
    s_add_u32 s5, s5, s6""")
    e("s_cmp_ge_u32 s3, 4\ns_cbranch_scc1 g2_prod")
    ACC = 16
    S0 = 88
    S1 = 132
    Z1 = 176
    e(f"s_setprio {cprio}")
    e("s_waitcnt lgkmcnt(0)")
    k.srd_fin(16, "ws", size=SZ_Z, off=OFF_Z1)
    k.srd_fin(20, "ws", size=SZ_Z, off=OFF_H)
    k.srd_fin(24, "bsp")
    e("""s_lshl_b32 s6, s4, 4
    s_add_u32 s6, s6, s5
    s_lshl_b32 s6, s6, 2
    s_add_u32 s6, s6, s3
    s_mul_i32 s6, s6, 9216
    v_lshlrev_b32 v3, 4, v2
    s_add_u32 s7, s6, 4096
    s_add_u32 s28, s6, 8192""")
    def z1loads():
        for ft in range(9):
            so = ["s6", "s7", "s28"][ft // 4]
            e(f"buffer_load_dwordx4 v[{Z1+4*ft}:{Z1+4*ft+3}], v3, s[16:19], {so} offen offset:{(ft%4)*1024}")
    if z1it is None:
        z1loads()
    e("""v_and_b32 v4, 15, v2
    v_lshrrev_b32 v5, 2, v4
    v_lshlrev_b32 v5, 3, v5
    v_and_b32 v6, 3, v4
    v_add_u32 v5, v5, v6
    v_lshlrev_b32 v5, 1, v5
    s_lshl_b32 s29, s4, 2
    s_add_u32 s29, s29, s3
    s_lshl_b32 s30, s29, 6""")
    e("buffer_load_ushort v14, v5, s[24:27], s30 offen")
    e("buffer_load_ushort v15, v5, s[24:27], s30 offen offset:8")
    e(f"""v_lshrrev_b32 v8, 2, v4
    v_lshlrev_b32 v9, 1, v8
    v_bfe_u32 v10, v4, 1, 1
    v_or_b32 v9, v9, v10
    v_lshrrev_b32 v10, 4, v2
    v_xor_b32 v9, v9, v10
    v_lshlrev_b32 v9, 4, v9
    v_lshlrev_b32 v8, 12, v8
    v_add_u32 v8, v8, v9
    v_and_b32 v9, 3, v4
    v_lshlrev_b32 v9, 7, v9
    v_add_u32 v8, v8, v9
    s_lshl_b32 s31, s3, 10
    s_add_u32 s31, s31, 18432
    v_add_u32 v8, s31, v8
    v_xor_b32 v9, 64, v8
    v_add_u32 v10, {2*BUF}, v8
    v_add_u32 v11, {2*BUF}, v9
    v_mov_b32 v6, v3
    v_add_u32 v7, {2*BUF}, v3""")
    for r in range(72):
        e(f"v_mov_b32 v{ACC+r}, 0")

    def reads(S, buf, kap):
        a = "v6" if buf < 2 else "v7"
        b = f"v{8 + kap + (0 if buf < 2 else 2)}"
        o = (buf & 1) * BUF
        L = [f"ds_read_b128 v[{S+4*j}:{S+4*j+3}], {b} offset:{o+512*j}" for j in range(2)]
        L += [f"ds_read_b128 v[{S+8+4*ft}:{S+8+4*ft+3}], {a} offset:{o+(kap*9+ft)*1024}" for ft in range(9)]
        return L

    def phase(S, R):
        m = []
        for ft in range(9):
            for j in range(2):
                c = ACC + 8 * ft + 4 * j
                m.append(f"v_mfma_f32_16x16x32_bf16 v[{c}:{c+3}], v[{S+8+4*ft}:{S+8+4*ft+3}], v[{S+4*j}:{S+4*j+3}], v[{c}:{c+3}]")
        if noreads:
            R = []
        if halfreads:
            R = R[:6]
        for i, x in enumerate(m):
            e(x)
            if i < len(R):
                e(R[i])

    e("s_barrier")
    st.mid(0)
    for x in reads(S0, 0, 0) + (reads(S1, 0, 1) if (noreads or halfreads) else []):
        e(x)
    if z1s is None:
        e("s_mov_b32 s32, 8")
        e("g2_cloop:")
        if z1it is not None:
            e(f"s_cmp_lg_u32 s32, {z1it}\ns_cbranch_scc1 g2_noz1")
            z1loads()
            e("g2_noz1:")
        if stamp:
            e("s_memtime s[40:41]")
        for b in range(4):
            e("s_waitcnt lgkmcnt(0)")
            if stamp and b == 0:
                e("s_mov_b32 m0, s32\ns_nop 0\nv_writelane_b32 v250, s40, m0")
            phase(S0, reads(S1, b, 1))
            e("s_waitcnt lgkmcnt(0)\ns_barrier")
            phase(S1, reads(S0, (b + 1) % 4, 0))
        e("s_sub_u32 s32, s32, 1\ns_cmp_lg_u32 s32, 0\ns_cbranch_scc1 g2_cloop")
    else:
        nroll = min(z1s) // 4
        def stage(b, ex=[], last=False):
            e("s_waitcnt lgkmcnt(0)")
            if stamp and b == 0:
                e("s_mov_b32 m0, s32\ns_nop 0\nv_writelane_b32 v250, s40, m0")
            phase(S0, reads(S1, b, 1) + (ex if zpos == 11 else []))
            e("s_waitcnt lgkmcnt(0)" + ("" if last else "\ns_barrier"))
            phase(S1, ([] if last else reads(S0, (b + 1) % 4, 0)) + (ex if zpos != 11 else []))
        e("s_mov_b32 s32, 8")
        if nroll:
            e("g2_cloop:")
            if stamp:
                e("s_memtime s[40:41]")
            for b in range(4):
                stage(b)
            e(f"s_sub_u32 s32, s32, 1\ns_cmp_lg_u32 s32, {8-nroll}\ns_cbranch_scc1 g2_cloop")
        for sg in range(4 * nroll, 32):
            if stamp and sg % 4 == 0:
                e(f"s_memtime s[40:41]\ns_mov_b32 s32, {8 - sg // 4}")
            ex = []
            for ft in range(9):
                if z1s[ft] == sg:
                    so = ["s6", "s7", "s28"][ft // 4]
                    ex.append(f"buffer_load_dwordx4 v[{Z1+4*ft}:{Z1+4*ft+3}], v3, s[16:19], {so} offen offset:{(ft%4)*1024}")
            stage(sg % 4, ex, sg == 31)
    st.mid(1)
    e("s_waitcnt vmcnt(0) lgkmcnt(0)")
    e("v_lshlrev_b32 v14, 16, v14\nv_lshlrev_b32 v15, 16, v15")
    e("""s_lshl_b32 s6, s29, 4
    s_add_u32 s6, s6, s5
    s_mul_i32 s6, s6, 9216
    s_add_u32 s7, s6, 4096
    s_add_u32 s28, s6, 8192
    s_nop 4""")
    T = S0
    O = S1
    for ft in range(9):
        for j in range(2):
            c = ACC + 8 * ft + 4 * j
            z = Z1 + 4 * ft + 2 * j
            t = T + 4 * ((2 * ft + j) % 4)
            e(f"v_lshlrev_b32 v{t}, 16, v{z}\nv_and_b32 v{t+1}, 0xffff0000, v{z}")
            e(f"v_lshlrev_b32 v{t+2}, 16, v{z+1}\nv_and_b32 v{t+3}, 0xffff0000, v{z+1}")
            for r in range(4):
                e(f"v_add_f32 v{c+r}, v{c+r}, v{14+j}")
            for r in range(4):
                e(f"v_mul_f32 v{c+r}, v{c+r}, v{t+r}")
            if ft < 8:
                d = O + 4 * (2 * (ft // 2) + j) + 2 * (ft & 1)
            else:
                d = O + 32 + 2 * j
            e(f"v_cvt_pk_bf16_f32 v{d}, v{c}, v{c+1}\nv_cvt_pk_bf16_f32 v{d+1}, v{c+2}, v{c+3}")
        if ft & 1 or ft == 8:
            sl = [2 * (ft // 2), 2 * (ft // 2) + 1] if ft < 8 else [8]
            for s in sl:
                so = ["s6", "s7", "s28"][s // 4]
                e(f"buffer_store_dwordx4 v[{O+4*s}:{O+4*s+3}], v3, s[20:23], {so} offen offset:{(s%4)*1024}")
    if stamp:
        e("s_waitcnt vmcnt(0)\ns_cmp_lg_u32 s3, 0\ns_cbranch_scc1 g2_end")
        st.end(16)
        e(f"v_writelane_b32 v250, s94, 0\nv_writelane_b32 v250, s86, 9\nv_lshlrev_b32 v16, 2, v2\ns_lshl_b32 s40, s2, 6\ns_add_u32 s40, s40, {256*64}\ns_mov_b64 exec, 0xffff")
        e("buffer_store_dword v250, v16, s[80:83], s40 offen")
    e("s_endpgm")
    e("g2_prod:")
    e("s_sub_u32 s3, s3, 4")
    if pprio:
        e(f"s_setprio {pprio}")
    e("s_waitcnt lgkmcnt(0)")
    k.srd_fin(8, "wsp")
    k.srd_fin(12, "ws", size=SZ_Z, off=OFF_Z2N)
    e("""v_lshrrev_b32 v3, 3, v2
    v_lshlrev_b32 v3, 12, v3
    v_bfe_u32 v4, v2, 4, 1
    s_lshl_b32 s6, s3, 1
    v_or_b32 v4, s6, v4
    v_and_b32 v5, 7, v2
    v_xor_b32 v4, v4, v5
    v_lshlrev_b32 v4, 4, v4
    v_add_u32 v3, v3, v4
    s_lshl_b32 s6, s4, 4
    s_add_u32 s6, s6, s3
    s_lshl_b32 s6, s6, 15
    v_add_u32 v4, s6, v3""")
    for cw in range(1, 4):
        e(f"v_add_u32 v{4+cw}, {cw*(131072-1024)}, v4")
    e("""s_mul_i32 s33, s3, 4608
    v_lshlrev_b32 v0, 4, v2
    v_add_u32 v8, s33, v0""")
    e(f"s_mul_i32 s6, s5, {64*9216}\nv_add_u32 v8, s6, v8\nv_add_u32 v9, 4096, v8")
    e(f"s_lshl_b32 s34, s3, 12\ns_add_u32 s34, s34, 18432")
    e(f"s_add_u32 s35, s4, s5\ns_and_b32 s35, s35, {P-1}")
    if srt is not None:
        e("s_lshl_b32 s35, s35, 3\ns_or_b32 s35, s35, 0x80000")
        order = [sorted(range(32), key=lambda q: (q - (D if q >= srt else 0) * (q % 4 == c), q % 4 != c)) for c in range(4)]
    vm = Trk(k, "vmcnt", 63)

    def piece(s, p):
        b = (s % 4) * BUF
        if p == 0:
            if srt is None:
                e(f"s_cmp_eq_u32 s35, {s % P}\ns_cselect_b32 s37, {(s + D) % 32}, {s}")
            else:
                e(f"s_bfe_u32 s37, {sum(order[c][s] << (8 * c) for c in range(4)):#x}, s35")
            e("s_mul_i32 s36, s37, 18432\ns_lshl_b32 s37, s37, 7")
            e(f"s_add_u32 m0, s34, {b}\ns_nop 0")
        if p == 4:
            e(f"s_add_u32 m0, s33, {b}\ns_nop 0")
        if p < 4:
            e(f"buffer_load_dwordx4 v{4+p}, s[8:11], s37 offen offset:{p*1024} lds")
        elif p < 8:
            e(f"buffer_load_dwordx4 v8, s[12:15], s36 offen offset:{(p-4)*1024} lds")
        else:
            e("s_add_u32 m0, m0, 4096\ns_mov_b32 exec_hi, 0")
            e(f"buffer_load_dwordx4 v9, s[12:15], s36 offen lds")
            e("s_mov_b32 exec_hi, -1")
        vm.issue(("dma", s))

    def issue(s):
        for p in range(9):
            piece(s, p)

    for s in range(3):
        issue(s)
    work = attention(k, vm, al, kps) if attn else []

    def cost(x):
        if callable(x):
            return 0
        c = 0
        for ln in x.split("\n"):
            ln = ln.strip()
            c += mc if ln.startswith("v_mfma") else 2 if ln.startswith(("v_exp", "v_rcp")) else 1 if ln.startswith(("v_", "buffer")) else 0
        return c

    for s in range(33):
        vm.wait(("dma", s))
        if s < 32 or z1s is None:
            e("s_barrier")
        left = 0
        stop = False
        for p in range(9):
            if s + 3 < 32:
                piece(s + 3, p)
            left += budget / 9 if s < 32 else 1 << 30
            while work and left > 0 and not stop:
                x = work.pop(0)
                if x == "STAGE":
                    stop = True
                    break
                left -= cost(x)
                x() if callable(x) else e(x)
        if not work and attn and not hasattr(k, "done"):
            k.done = s
    e("s_endpgm")
    e("g2_end:\ns_endpgm")
    return k


def attention(k, vm, al=0, kps=3):
    e = k.e
    MK, PK, OM, OT, KA, VA, TA, QA, S = 10, 18, 22, 26, 32, 104, 140, 176, 184
    TM = S + 4
    k.srd_fin(16, "ws", size=OFF_OT + SZ_OT - OFF_Q, off=OFF_Q)
    e(f"""s_and_b32 s6, s3, 1
    s_lshl_b32 s28, s5, 1
    s_add_u32 s28, s28, s6
    s_lshl_b32 s29, s4, 2
    s_and_b32 s6, s3, 2
    s_add_u32 s29, s29, s6
    v_mul_u32_u24 v1, 12, v2
    v_and_b32 v3, 15, v2
    v_lshlrev_b32 v3, 6, v3
    v_lshrrev_b32 v30, 4, v2
    v_lshl_add_u32 v3, v30, 4, v3
    s_lshl_b32 s6, s28, 6
    s_add_u32 s74, s6, s29
    s_mul_i32 s74, s74, 1536""")
    for u in range(10):
        e(f"s_add_i32 s38, s29, {u-8}\ns_max_i32 s39, s38, 0\ns_add_u32 s39, s39, s6\ns_mul_i32 s39, s39, 2688\ns_add_u32 s{40+u}, s39, {OFF_KV-OFF_Q}")

    def ldq(f):
        e(f"buffer_load_dwordx3 v[{QA+4*(f&1)}:{QA+4*(f&1)+2}], v1, s[16:19], s74 offen offset:{768*f}")
        vm.issue(('q', f))

    def ldk(u, js=(0, 1)):
        for j in js:
            d = KA + 8 * (u % 9) + 4 * j
            e(f"buffer_load_dwordx3 v[{d}:{d+2}], v1, s[16:19], s{40+u} offen offset:{768*j}")
            vm.issue(('k', u))

    def ldv(u):
        d = VA + 4 * (u % 9)
        e(f"buffer_load_dwordx4 v[{d}:{d+3}], v0, s[16:19], s{40+u} offen offset:1536")
        vm.issue(('v', u))

    def ldt(us):
        e("s_mov_b32 exec_lo, 0x00030003\ns_mov_b32 exec_hi, 0x00030003")
        for u in us:
            d = TA + 4 * (u % 9)
            e(f"buffer_load_dwordx4 v[{d}:{d+3}], v3, s[16:19], s{40+u} offen offset:2560")
            vm.issue(('t', u))
        e("s_mov_b64 exec, -1")

    for r in range(36):
        e(f"v_mov_b32 v{TA+r}, 0x3f803f80")
    for f in range(2):
        e(f"v_mov_b32 v{QA+4*f+3}, 0x3f803f80")
    for u in range(9):
        if u < 8:
            e(f"s_add_i32 s38, s29, {u-8}\ns_cmp_lt_i32 s38, 0\ns_cselect_b32 s38, 0xf149f149, 0")
        for j in range(2):
            e(f"v_mov_b32 v{KA+8*u+4*j+3}, {'s38' if u < 8 else 0}")
    msk = {}
    for th in range(-4, 8):
        msk[th] = 50 + 2 * (th + 4)
        m = 0
        for l in range(64):
            if perm(0, l & 15) - 8 * (l >> 4) >= th:
                m |= 1 << l
        e(f"s_mov_b32 s{msk[th]}, {m & 0xffffffff:#x}\ns_mov_b32 s{msk[th]+1}, {m >> 32:#x}")
    e("v_mov_b32 v30, 0xffff\nv_mov_b32 v31, 0xffff0000")
    for jq in range(2):
        for jk in range(2):
            for rp in range(2):
                th = 4 * jk + 2 * rp - 4 * jq
                d = MK + 4 * jq + 2 * jk + rp
                e(f"v_cndmask_b32 v{d}, 0, v30, s[{msk[th]}:{msk[th]+1}]")
                e(f"v_cndmask_b32 v{PK}, 0, v31, s[{msk[th+1]}:{msk[th+1]+1}]")
                e(f"v_or_b32 v{d}, v{d}, v{PK}")
    e("s_mov_b32 s76, 0x3eae1a93")
    e(f"""s_lshl_b32 s6, s29, 5
    s_add_u32 s6, s6, s28
    s_lshl_b32 s6, s6, 10
    s_add_u32 s6, s6, {OFF_OM-OFF_Q}
    s_add_u32 s7, s6, 32768
    s_lshl_b32 s38, s29, 12
    s_lshr_b32 s39, s28, 4
    s_lshl_b32 s39, s39, 11
    s_add_u32 s38, s38, s39
    s_bfe_u32 s39, s28, 0x20002
    s_lshl_b32 s39, s39, 8
    s_add_u32 s38, s38, s39
    s_and_b32 s39, s28, 3
    s_lshl_b32 s39, s39, 2
    s_add_u32 s38, s38, s39
    s_add_u32 s38, s38, {OFF_OT-OFF_Q}
    s_add_u32 s39, s38, 4096""")
    L = [lambda: (ldq(0), ldq(1), ldk(0), ldk(1), ldk(2), ldk(3)), "STAGE", lambda: [ldk(u) for u in range(4, 9)], "STAGE",
         lambda: [ldv(u) for u in range(9)], "STAGE", lambda: ldt(range(9))]
    late = []
    if al == 1:
        L = [lambda: (ldq(0), ldk(0)), "STAGE"]
        for u in range(1, 9, 2):
            L += [lambda u=u: (ldk(u), ldk(u + 1)), "STAGE"]
        L += [lambda: ldq(1)]
        late = [lambda u=u: (ldv(u), ldt([u])) for u in range(9)]
    if al == 2:
        L = [lambda: ldq(0)]
        for u in range(0, 9, 3):
            L += [lambda u=u: (ldk(u), ldk(u + 1), ldk(u + 2)), "STAGE"]
        L += [lambda: ldq(1)]
        late = [lambda u=u: (ldv(u), ldt([u])) for u in range(9)]
    if al == 4:
        L = [lambda: (ldq(0), [ldk(u) for u in range(9)], ldq(1))] + ["STAGE"] * kps + [lambda: [ldv(u) for u in range(9)], lambda: ldt(range(9))]
    if al == 5:
        L = [lambda: (ldq(0), [ldk(u) for u in range(9)], ldq(1))] + ["STAGE"] * kps
        late = [lambda: [ldv(u) for u in range(9)], lambda: ldt(range(9))]
    if al == 3:
        L = [lambda: ldq(0)]
        for i in range(18):
            L += [lambda i=i: ldk(i // 2, (i & 1,))] + (["STAGE"] if i % kps == kps - 1 else [])
        L += [lambda: ldq(1)]
        late = [lambda u=u: (ldv(u), ldt([u])) for u in range(9)]
    s = S
    for n in range(4):
        gq, jq = n >> 1, n & 1
        L.append(lambda n=n: vm.wait(('q', n)))
        for up in range(9):
            u = gq + up
            L.append(lambda u=u: vm.wait(('k', u)))
            for jk in range(2):
                c = S + 8 * up + 4 * jk
                a = KA + 8 * (u % 9) + 4 * jk
                L.append(f"v_mfma_f32_16x16x32_bf16 v[{c}:{c+3}], v[{a}:{a+3}], v[{QA+4*jq}:{QA+4*jq+3}], 0")
        L.append("s_nop 7")
        if late:
            L.append(late.pop(0))
        if n < 2:
            L.append(lambda n=n: ldq(n + 2))
        if n == 1:
            L.append(lambda: ldk(9))
            L.append(f"v_mov_b32 v{KA+3}, 0\nv_mov_b32 v{KA+7}, 0")
        for jk in range(2):
            for r in range(4):
                m = msk[4 * jk + r - 4 * jq]
                L.append(f"v_cndmask_b32 v{s+64+4*jk+r}, v{s+4*jk+r}, v{s+64+4*jk+r}, s[{m}:{m+1}]")
        for c in range(4):
            b = s + 8 + 16 * c
            L.append(f"v_max3_f32 v{TM+c}, v{b}, v{b+1}, v{b+2}")
        for i in range(3, 15, 2):
            for c in range(4):
                b = s + 8 + 16 * c
                L.append(f"v_max3_f32 v{TM+c}, v{TM+c}, v{b+i}, v{b+i+1}")
        L.append(f"v_max3_f32 v{TM}, v{TM}, v{s+8+15}, v{s+8+31}")
        L.append(f"v_max3_f32 v{TM+2}, v{TM+2}, v{s+8+47}, v{s+8+63}")
        L.append(f"v_max3_f32 v{TM}, v{TM}, v{TM+1}, v{TM+3}")
        L.append(f"v_max_f32 v{TM}, v{TM}, v{TM+2}")
        L.append(f"v_mov_b32 v{TM+1}, v{TM}\ns_nop 1\nv_permlane16_swap_b32 v{TM}, v{TM+1}")
        L.append(f"v_max_f32 v{TM}, v{TM}, v{TM+1}")
        L.append(f"v_mov_b32 v{TM+1}, v{TM}\ns_nop 1\nv_permlane32_swap_b32 v{TM}, v{TM+1}")
        L.append(f"v_max_f32 v{TM}, v{TM}, v{TM+1}")
        L.append(f"v_mul_f32 v{TM}, s76, v{TM}")
        for up in (8, 1, 2, 3, 4, 5, 6, 7):
            b = s + 8 * up
            if late:
                L.append(late.pop(0))
                if up in (8, 1, 2) and late:
                    L.append(late.pop(0))
            L += [f"v_fma_f32 v{b+i}, v{b+i}, s76, -v{TM}" for i in range(8)]
            L += [f"v_exp_f32 v{b+i}, v{b+i}" for i in range(8)]
            L += [f"v_cvt_pk_bf16_f32 v{b+i}, v{b+2*i}, v{b+2*i+1}" for i in range(4)]
            if up == 8:
                L += [f"v_bfi_b32 v{s+i}, v{MK+4*jq+i}, 0, v{b+i}" for i in range(4)]
                L += [f"v_and_b32 v{b+i}, v{MK+4*jq+i}, v{b+i}" for i in range(4)]
        L.append("s_nop 1")
        for up in range(9):
            u = gq + up
            p = S + 8 * up
            L.append(lambda u=u: (vm.wait(('v', u)), vm.wait(('t', u))))
            for c, a in ((OM, VA), (OT, TA)):
                a += 4 * (u % 9)
                L.append(f"v_mfma_f32_16x16x32_bf16 v[{c}:{c+3}], v[{a}:{a+3}], v[{p}:{p+3}], {'0' if up == 0 else f'v[{c}:{c+3}]'}")
        L.append("s_nop 7\ns_nop 1")
        if n == 1:
            L.append(lambda: (ldv(9), ldt([9])))
        o, t = OM, OT
        L.append(f"v_rcp_f32 v{t+2}, v{t+2}\ns_nop 0")
        L += [f"v_mul_f32 v{o+r}, v{o+r}, v{t+2}" for r in range(4)]
        L += [f"v_mul_f32 v{t+r}, v{t+r}, v{t+2}" for r in range(2)]
        L += [f"v_cvt_pk_bf16_f32 v{PK+2*jq+h}, v{o+2*h}, v{o+2*h+1}" for h in range(2)]
        L += [f"v_cvt_pk_bf16_f32 v{30+jq}, v{t}, v{t+1}"]
        L.append(lambda gq=gq, jq=jq: (e(f"s_mov_b64 exec, 0xffff\nbuffer_store_dword v{30+jq}, v0, s[16:19], s{38+gq} offen offset:{1024*jq}\ns_mov_b64 exec, -1"), vm.issue()))
        if jq == 1:
            L.append(lambda gq=gq: (e(f"buffer_store_dwordx4 v[{PK}:{PK+3}], v0, s[16:19], s{6+gq} offen"), vm.issue()))
    return L


if __name__ == "__main__":
    k = gen_g2(stamp=True)
    print("attention done at stage", k.done)
    open("t_g2.s", "w").write(build([k]))
```

```python
from common import *


def gen_g3(stamp=False, kidx=3, D=0, M=4, DEPTH=3, il=2, i0=0, zp=1, lf='', lw=''):
    k = Kern("g3_kernel", 256, 256, 4 * 15 * 1024, 244, agpr=96, sgpr=102)
    st = Stamps(k, stamp, kidx)
    e = k.e
    e("s_cmp_ge_u32 s2, 256\ns_cbranch_scc1 g3_end")
    st.begin()
    k.srd(8, "ws"); k.srd(24, "x"); k.srd(28, "out")
    e("v_lshrrev_b32 v1, 6, v0\nv_and_b32 v2, 63, v0")
    e("s_nop 0\nv_readfirstlane_b32 s3, v1")
    e("""s_and_b32 s4, s2, 1
    s_lshl_b32 s4, s4, 4
    s_bfe_u32 s6, s2, 0x10001
    s_lshl_b32 s6, s6, 3
    s_add_u32 s4, s4, s6
    s_bfe_u32 s6, s2, 0x30003
    s_add_u32 s4, s4, s6
    s_bfe_u32 s5, s2, 0x10002
    s_lshl_b32 s5, s5, 2
    s_lshr_b32 s6, s2, 6
    s_add_u32 s5, s5, s6""")
    e("""v_lshlrev_b32 v3, 4, v2
    v_lshrrev_b32 v4, 4, v2
    v_lshlrev_b32 v4, 3, v4
    v_and_b32 v5, 7, v2
    v_add_u32 v4, v4, v5
    v_lshlrev_b32 v4, 4, v4
    v_add_u32 v4, 4096, v4
    v_bfe_u32 v5, v2, 3, 1
    v_mul_u32_u24 v5, 4608, v5
    v_add_u32 v4, v4, v5""")
    e(f"""s_lshl_b32 s6, s4, 5
    s_lshl_b32 s7, s3, 2
    s_add_u32 s6, s6, s7
    s_mul_i32 s6, s6, 9216
    v_add_u32 v5, s6, v3
    v_add_u32 v6, {16*9216}, v5""")
    e(f"""s_lshl_b32 s6, s4, 6
    s_lshl_b32 s7, s3, 3
    s_add_u32 s6, s6, s7
    s_lshl_b32 s6, s6, 10
    v_add_u32 v7, s6, v3
    v_add_u32 v8, {32*1024}, v7""")
    e(f"""s_lshl_b32 s6, s4, 3
    s_lshl_b32 s7, s3, 1
    s_add_u32 s6, s6, s7
    s_lshl_b32 s6, s6, 10
    v_add_u32 v9, s6, v3
    v_add_u32 v10, 4096, v9""")
    e(f"""s_lshl_b32 s6, s5, 2
    s_add_u32 s6, s6, s3
    s_mul_i32 s32, s6, {23*4608}""")
    e("""v_and_b32 v11, 15, v2
    v_lshrrev_b32 v12, 2, v11
    v_lshlrev_b32 v12, 3, v12
    v_and_b32 v11, 3, v11
    v_add_u32 v11, v11, v12
    s_lshl_b32 s6, s4, 6
    s_lshr_b32 s7, s3, 1
    s_lshl_b32 s7, s7, 5
    s_add_u32 s6, s6, s7
    s_and_b32 s7, s3, 1
    s_lshl_b32 s7, s7, 2
    s_add_u32 s6, s6, s7
    v_add_u32 v11, s6, v11
    v_mul_u32_u24 v11, 1152, v11
    s_mul_i32 s6, s5, 144
    v_add_u32 v11, s6, v11
    v_lshrrev_b32 v12, 4, v2
    v_lshlrev_b32 v13, 3, v12
    v_add_u32 v13, v13, v11
    v_lshlrev_b32 v12, 4, v12
    v_add_u32 v12, v12, v11""")
    e("s_waitcnt lgkmcnt(0)")
    for s in (12, 16, 20):
        e(f"s_mov_b64 s[{s}:{s+1}], s[8:9]")
    k.srd_fin(8, "ws", size=SZ_Z, off=OFF_H)
    k.srd_fin(12, "ws", size=SZ_W3, off=OFF_W3)
    k.srd_fin(16, "ws", size=SZ_OM, off=OFF_OM)
    k.srd_fin(20, "ws", size=SZ_OT, off=OFF_OT)
    k.srd_fin(24, "x"); k.srd_fin(28, "out")
    BUF0 = 44
    T4 = 28
    XR = 16

    chunks = [("ot",)] + [("reg", a, p) for a in range(4) for p in range(4)] + [("sp", u) for u in range(2)] + [("om", u) for u in range(4)]
    sreg = [40]

    vm = Trk(k, "vmcnt", 63)

    def nsr():
        r = sreg[0]
        sreg[0] = 40 + (sreg[0] - 40 + 1) % 16
        return r

    def loads(c, pos):
        b = BUF0 + 32 * (pos % DEPTH)
        ch = chunks[c]
        out = []

        def so(val):
            if val == 0:
                return "", "0"
            r = nsr()
            return f"s_mov_b32 s{r}, {val}\n", f"s{r}"
        if ch[0] == "ot":
            for G in range(2):
                for j in range(2):
                    d = b + 4 * (2 * G + j)
                    out.append(f"buffer_load_dwordx4 v[{d}:{d+3}], v{9+G}, s[20:23], 0 offen offset:{j*1024}")
        elif ch[0] == "reg":
            a, p = ch[1:]
            pre, sr = so(a * 9216 + p * 2048)
            for G in range(2):
                for j in range(2):
                    d = b + 4 * (2 * G + j)
                    out.append(pre + f"buffer_load_dwordx4 v[{d}:{d+3}], v{5+G}, s[8:11], {sr} offen offset:{j*1024}")
                    pre = ""
        elif ch[0] == "sp":
            u = ch[1]
            for h in range(2):
                pre, sr = so((2 * u + h) * 9216 + 8192)
                for G in range(2):
                    d = b + 4 * (2 * G + h)
                    out.append(pre + f"buffer_load_dwordx4 v[{d}:{d+3}], v{5+G}, s[8:11], {sr} offen")
                    pre = ""
        else:
            u = ch[1]
            pre, sr = so(u * 2048)
            for G in range(2):
                for h in range(2):
                    d = b + 4 * (2 * G + h)
                    out.append(pre + f"buffer_load_dwordx4 v[{d}:{d+3}], v{7+G}, s[16:19], {sr} offen offset:{h*1024}")
                    pre = ""
        r = nsr()
        pre = f"s_add_u32 s{r}, s32, {c*4608}\n"
        for nt in range(4):
            d = b + 16 + 4 * nt
            out.append(pre + f"buffer_load_dwordx4 v[{d}:{d+3}], v3, s[12:15], s{r} offen offset:{nt*1024}")
            pre = ""
        if c == 0 or c % 2 == 1:
            d = T4 + 4 * (((pos + 1) // 2) % 4)
            out.append(f"buffer_load_dwordx4 v[{d}:{d+3}], v4, s[12:15], s{r} offen")
        return [t + (lw if 's[12:15]' in t else lf) for t in out]

    def mfmas(c, pos, lds=(), tag=None):
        b = BUF0 + 32 * (pos % DEPTH)
        lds = list(lds)
        if chunks[c][0] in ("sp", "om"):
            for G in range(2):
                d = b + 8 * G
                e(f"v_swap_b32 v{d+2}, v{d+4}\nv_swap_b32 v{d+3}, v{d+5}")
            e("s_nop 1")
        i = 0
        for nt in range(5):
            for rt in range(4):
                a = 20 * rt + 4 * nt
                w = b + 16 + 4 * nt
                if nt == 4:
                    w = T4 + 4 * (((pos + 1) // 2) % 4)
                    if c and c % 2 == 0:
                        a = 80 + 4 * rt
                e(f"v_mfma_f32_16x16x32_bf16 a[{a}:{a+3}], v[{w}:{w+3}], v[{b+4*rt}:{b+4*rt+3}], a[{a}:{a+3}]")
                if lds and il and i >= i0 and (i - i0) % il == 0:
                    e(lds.pop(0)); vm.issue(tag)
                i += 1
        for t in lds:
            e(t); vm.issue(tag)

    n = len(chunks)
    ncls = M if D else 1
    e(f"buffer_load_dwordx4 v[{XR}:{XR+3}], v12, s[24:27], 0 offen")
    e(f"buffer_load_dwordx4 v[{XR+4}:{XR+7}], v12, s[24:27], 0 offen offset:64")
    e(f"buffer_load_dwordx2 v[{XR+8}:{XR+9}], v13, s[24:27], 0 offen offset:128")
    e(f"s_cmp_ge_u32 s3, 2\ns_cbranch_scc1 g3_no0")
    for t in loads(0, 0):
        e(t)
    e(f"g3_no0:")
    if ncls > 1:
        e(f"s_add_u32 s33, s4, s5\ns_and_b32 s33, s33, {M-1}")
        for q in range(1, ncls):
            e(f"s_cmp_eq_u32 s33, {q}\ns_cbranch_scc1 g3_c{q}")
    for q in range(ncls):
        op = sorted(range(11), key=lambda c: (c - (D if c % M == q else 0), c % M != q))
        od = [0] + [2 * u + 1 + h for u in op for h in range(2)]
        vm.q = ["x"]
        e(f"g3_c{q}:")
        for p in range(1, DEPTH):
            for t in loads(od[p], p):
                e(t); vm.issue(p)
            if p == zp:
                for r in range(96):
                    e(f"v_accvgpr_write_b32 a{r}, 0")
        vm.wait("x")
        st.mid(0)
        for w in range(4):
            e(f"s_cmp_lg_u32 s3, {w}\ns_cbranch_scc1 g3_x{q}{w}")
            for dw in range(10):
                e(f"v_lshlrev_b32 v26, 16, v{XR+dw}\nv_and_b32 v27, 0xffff0000, v{XR+dw}")
                e(f"v_accvgpr_write_b32 a{20*w+2*dw}, v26\nv_accvgpr_write_b32 a{20*w+2*dw+1}, v27")
            e(f"g3_x{q}{w}:")
        e(f"s_nop 1\ns_cmp_ge_u32 s3, 2\ns_cbranch_scc1 g3_no0b{q}")
        mfmas(0, 0)
        e(f"g3_no0b{q}:")
        for p in range(1, n):
            nxt = p - 1 + DEPTH
            ld = loads(od[nxt], nxt) if nxt < n else []
            if not il:
                for t in ld:
                    e(t); vm.issue(nxt)
                ld = []
            vm.wait(p)
            if stamp and p % 2 == 0:
                e(f"s_memtime s[{56+p-2}:{57+p-2}]")
            mfmas(od[p], p, ld, nxt)
        if q < ncls - 1:
            e("s_branch g3_fin")
    e("g3_fin:")
    st.mid(1)
    T = BUF0
    e(f"s_mul_i32 s6, s3, {15*1024}\nv_add_u32 v14, s6, v3")
    e("s_nop 5")
    for w in range(4):
        lab = f"g3_red{w}"
        e(f"s_cmp_lg_u32 s3, {w}\ns_cbranch_scc1 {lab}")
        for nt in range(5):
            for rt in range(4):
                if rt == w:
                    continue
                q = (w - rt - 1) & 3
                a = 20 * rt + 4 * nt
                if nt == 4:
                    e("s_mov_b32 exec_hi, 0")
                    e(f"ds_write_b128 v3, a[{a}:{a+3}] offset:{((rt*3+q)*5+nt)*1024}")
                    e("s_not_b64 exec, exec")
                    e(f"ds_write_b128 v3, a[{80+4*rt}:{83+4*rt}] offset:{((rt*3+q)*5+nt)*1024}")
                    e("s_mov_b64 exec, -1")
                else:
                    e(f"ds_write_b128 v3, a[{a}:{a+3}] offset:{((rt*3+q)*5+nt)*1024}")
        for r in range(20):
            e(f"v_accvgpr_read_b32 v{T+60+r}, a{20*w+r}")
        e("s_mov_b32 exec_lo, 0")
        for r in range(4):
            e(f"v_accvgpr_read_b32 v{T+76+r}, a{80+4*w+r}")
        e("s_mov_b32 exec_lo, -1")
        e(f"{lab}:")
    e("s_waitcnt lgkmcnt(0)")
    st.mid(2)
    e("s_barrier")
    X = T + 60
    for pr in range(3):
        for q in range(3):
            for nt in range(2 * pr, min(2 * pr + 2, 5)):
                d = T + 20 * q + 4 * nt
                e(f"ds_read_b128 v[{d}:{d+3}], v14 offset:{(q*5+nt)*1024}")
    left = 15
    for pr in range(3):
        nts = list(range(2 * pr, min(2 * pr + 2, 5)))
        for q in range(3):
            left -= len(nts)
            e(f"s_waitcnt lgkmcnt({left})")
            for r in range(4 * nts[0], 4 * nts[-1] + 4, 2):
                e(f"v_pk_add_f32 v[{X+r}:{X+r+1}], v[{X+r}:{X+r+1}], v[{T+20*q+r}:{T+20*q+r+1}]")
        if pr == 2:
            for r in range(4):
                e(f"v_mov_b32 v{T+r}, v{X+16+r}")
            e("s_nop 1")
            for r in range(4):
                e(f"v_permlane32_swap_b32 v{T+r}, v{X+16+r}")
            e("s_nop 1")
            for r in range(0, 4, 2):
                e(f"v_pk_add_f32 v[{X+16+r}:{X+17+r}], v[{X+16+r}:{X+17+r}], v[{T+r}:{T+r+1}]")
        for dw in range(4 * pr, min(4 * pr + 4, 10)):
            e(f"v_cvt_pk_bf16_f32 v{XR+dw}, v{X+2*dw}, v{X+2*dw+1}")
        if pr < 2:
            e(f"buffer_store_dwordx4 v[{XR+4*pr}:{XR+4*pr+3}], v12, s[28:31], 0 offen offset:{64*pr}")
    e("s_mov_b32 exec_hi, 0")
    e(f"buffer_store_dwordx2 v[{XR+8}:{XR+9}], v13, s[28:31], 0 offen offset:128")
    st.mid(3)
    if stamp:
        e("s_mov_b64 exec, -1\ns_movk_i32 s100, 16384")
        e("s_waitcnt vmcnt(0)\ns_cmp_lg_u32 s3, 0\ns_cbranch_scc1 g3_end")
        st.end(32)
        for i in range(11):
            e(f"v_mov_b32 v{32+i}, s{56+2*i}")
        e("v_mov_b32 v43, s86\ns_mov_b64 exec, 1")
        for q in range(3):
            e(f"buffer_store_dwordx4 v[{32+4*q}:{35+4*q}], v48, s[80:83], s100 offen offset:{16*q}")
    e("g3_end:\ns_endpgm")
    return k


if __name__ == "__main__":
    open("t_g3.s", "w").write(build([gen_g3(stamp=True)]))
```

```python
from common import *
OFF_PB = 0
SZ_PB = 64 * 4 * 3 * 4 * 5120
SZ_F3 = 16384


def gen_g3b(stamp=False, kidx=3, R=3, il=2, xm=0):
    SLOT = 18432
    k = Kern("g3_kernel", 256, 256, R * SLOT, 100 + 16 * (R + 1), agpr=72, sgpr=102)
    st = Stamps(k, stamp, kidx)
    e = k.e
    e("s_cmp_ge_u32 s2, 256\ns_cbranch_scc1 g3_end")
    st.begin()
    k.srd(8, "ws"); k.srd(24, "x"); k.srd(28, "out")
    e("v_lshrrev_b32 v1, 6, v0\nv_and_b32 v2, 63, v0")
    e("s_nop 0\nv_readfirstlane_b32 s3, v1")
    if xm == 0:
        e("""s_and_b32 s33, s2, 3
        s_bfe_u32 s4, s2, 0x10002
        s_lshl_b32 s4, s4, 3
        s_bfe_u32 s6, s2, 0x30003
        s_add_u32 s4, s4, s6
        s_lshr_b32 s5, s2, 6""")
    else:
        e("""s_lshr_b32 s33, s2, 6
        s_and_b32 s4, s2, 7
        s_lshl_b32 s4, s4, 1
        s_bfe_u32 s6, s2, 0x10003
        s_add_u32 s4, s4, s6
        s_bfe_u32 s5, s2, 0x20004""")
    e(f"""s_lshl_b32 s34, s4, 2
    s_add_u32 s34, s34, s3
    v_lshlrev_b32 v3, 4, v2
    s_lshl_b32 s6, s34, 2
    s_add_u32 s6, s6, s33
    s_mul_i32 s7, s6, {4*9216}
    v_add_u32 v5, s7, v3
    s_lshl_b32 s7, s6, 13
    v_add_u32 v7, s7, v3
    s_add_u32 s6, s6, s33
    s_lshl_b32 s7, s6, 10
    v_add_u32 v9, s7, v3""")
    e(f"""s_and_b32 s6, s3, 1
    s_lshl_b32 s7, s5, 1
    s_add_u32 s6, s6, s7
    s_lshl_b32 s6, s6, 2
    s_add_u32 s6, s6, s33
    s_mul_i32 s6, s6, 23
    s_lshr_b32 s7, s3, 1
    s_add_u32 s6, s6, s7
    s_mul_i32 s6, s6, 4608
    v_add_u32 v6, s6, v3
    v_add_u32 v8, 4096, v6
    s_mul_i32 s32, s3, 4608""")
    e("s_waitcnt lgkmcnt(0)")
    for s in (12, 16, 20, 36):
        e(f"s_mov_b64 s[{s}:{s+1}], s[8:9]")
    k.srd_fin(8, "ws", size=SZ_Z + SZ_F3, off=OFF_H)
    k.srd_fin(12, "ws", size=SZ_W3, off=OFF_W3)
    k.srd_fin(20, "ws", size=SZ_OT, off=OFF_OT)
    XR, WA, WB, HB = 16, 28, 64, 100
    chunks = [("ot",)] + [("reg", a, p) for a in range(4) for p in range(4)] + [("sp", u) for u in range(2)] + [("om", u) for u in range(4)]
    sreg = [40]
    vm = Trk(k, "vmcnt", 63)

    def so(val):
        if val == 0:
            return "", "0"
        r = sreg[0]
        sreg[0] = 40 + (sreg[0] - 40 + 1) % 16
        return f"s_mov_b32 s{r}, {val}\n", f"s{r}"

    def cks(s):
        return [0] if s == 0 else [2 * s - 1, 2 * s]

    def hreg(s, ch):
        return HB + 16 * (s % (R + 1)) + 8 * ch

    def loads(s):
        out = []
        pre, sr = so(cks(s)[0] * 4608)
        pre += f"s_add_u32 m0, s32, {(s % R) * SLOT}\ns_nop 0\n"
        for t in range(4):
            out.append(pre + f"buffer_load_dwordx4 v6, s[12:15], {sr} offen offset:{t*1024} lds")
            pre = ""
        out.append(f"s_add_u32 m0, m0, 4096\ns_mov_b32 exec_hi, 0\nbuffer_load_dwordx4 v8, s[12:15], {sr} offen lds\ns_mov_b32 exec_hi, -1")
        for ch, c in enumerate(cks(s)):
            b = hreg(s, ch)
            t = chunks[c]
            for j in range(2):
                d = b + 4 * j
                if t[0] == "ot":
                    out.append(f"buffer_load_dwordx4 v[{d}:{d+3}], v9, s[20:23], 0 offen offset:{j*1024}")
                elif t[0] == "reg":
                    if j == 0 and ch == 0:
                        pre, sr = so(t[1] * 9216 + t[2] * 2048)
                    out.append(pre + f"buffer_load_dwordx4 v[{d}:{d+3}], v5, s[8:11], {sr} offen offset:{ch*2048+j*1024}")
                elif t[0] == "sp":
                    pre, sr = so((2 * t[1] + j) * 9216 + 8192)
                    out.append(pre + f"buffer_load_dwordx4 v[{d}:{d+3}], v5, s[8:11], {sr} offen")
                else:
                    if j == 0 and ch == 0:
                        pre, sr = so(t[1] * 2048)
                    out.append(pre + f"buffer_load_dwordx4 v[{d}:{d+3}], v7, s[16:19], {sr} offen offset:{ch*2048+j*1024}")
                pre = ""
        return out

    def reads(s, ch, W):
        o = (s % R) * SLOT + ch * 9216
        return [f"ds_read_b128 v[{W+4*T}:{W+4*T+3}], v3 offset:{o + (T>>2)*4608 + (T&3)*1024}" for T in range(8)] + \
               [f"ds_read_b128 v[{W+32}:{W+35}], v4 offset:{o}"]

    def phase(s, ch, W, rd, ld, tag):
        b = hreg(s, ch)
        rd, ld = list(rd), list(ld)
        if chunks[cks(s)[ch]][0] in ("sp", "om"):
            e(f"v_swap_b32 v{b+2}, v{b+4}\nv_swap_b32 v{b+3}, v{b+5}\ns_nop 1")
        i = 0
        for T in range(9):
            for j in range(2):
                a = (j * 9 + T) * 4
                e(f"v_mfma_f32_16x16x32_bf16 a[{a}:{a+3}], v[{W+4*T}:{W+4*T+3}], v[{b+4*j}:{b+4*j+3}], a[{a}:{a+3}]")
                if rd:
                    e(rd.pop(0))
                if ld and i % il == il - 1:
                    e(ld.pop(0)); vm.issue(tag)
                i += 1
        for t in ld:
            e(t); vm.issue(tag)

    e("s_cmp_ge_u32 s33, 2\ns_cbranch_scc1 g3_no0")
    for t in loads(0):
        e(t)
    e("g3_no0:")
    vm.q = [0]
    for s in range(1, R):
        for t in loads(s):
            e(t); vm.issue(s)
        if s == 1:
            k.srd_fin(16, "ws", size=SZ_OM, off=OFF_OM)
            k.srd_fin(36, "ws", size=SZ_PB, off=OFF_PB)
            k.srd_fin(24, "x"); k.srd_fin(28, "out")
            e("""v_lshrrev_b32 v10, 4, v2
            v_lshlrev_b32 v4, 3, v10
            v_and_b32 v11, 7, v2
            v_add_u32 v4, v4, v11
            v_lshlrev_b32 v4, 4, v4
            v_add_u32 v4, 4096, v4
            v_bfe_u32 v11, v2, 3, 1
            v_mul_u32_u24 v11, 4608, v11
            v_add_u32 v4, v4, v11""")
            e(f"""v_bfe_u32 v11, v2, 2, 2
            v_lshlrev_b32 v11, 3, v11
            v_and_b32 v12, 3, v2
            v_add_u32 v11, v11, v12
            s_lshl_b32 s6, s34, 5
            v_add_u32 v11, s6, v11
            v_mul_u32_u24 v11, 1152, v11
            s_mul_i32 s6, s5, 288
            v_add_u32 v11, s6, v11
            s_lshr_b32 s6, s33, 1
            s_mul_i32 s6, s6, 144
            s_and_b32 s7, s33, 1
            s_lshl_b32 s35, s7, 6
            s_add_u32 s6, s6, s35
            v_lshlrev_b32 v12, 4, v10
            v_add3_u32 v12, v12, v11, s6
            s_mul_i32 s7, s7, 4608
            s_add_u32 s7, s7, 128
            v_lshrrev_b32 v13, 1, v10
            v_mul_u32_u24 v13, 144, v13
            v_and_b32 v10, 1, v10
            v_lshl_add_u32 v13, v10, 3, v13
            v_add3_u32 v13, v13, v11, s7
            s_movk_i32 s35, 4608
            s_lshl_b32 s6, s4, 2
            s_add_u32 s6, s6, s5
            s_mul_i32 s7, s6, {48*5120}
            s_mul_i32 s4, s3, 5120
            s_add_u32 s7, s7, s4
            v_add_u32 v14, s7, v3
            v_add_u32 v15, 4096, v14
            s_lshl_b32 s6, s6, 2
            s_add_u32 s6, s6, s3
            s_lshl_b32 s6, s6, 6
            s_add_u32 s4, s6, {SZ_Z}
            s_lshl_b32 s6, s33, 2
            s_add_u32 s5, s4, s6""")
            for r in range(72):
                e(f"v_accvgpr_write_b32 a{r}, 0")
    e("s_cmp_ge_u32 s33, 2\ns_cbranch_scc1 g3_no0b")
    q0 = list(vm.q)
    vm.wait(0)
    e("s_barrier")
    for t in reads(0, 0, WB):
        e(t)
    e("g3_no0b:")
    vm.q = q0
    vm.wait(1)
    e("s_waitcnt lgkmcnt(0)\ns_barrier")
    st.mid(0)
    for t in reads(1, 0, WA):
        e(t)
    for t in loads(R):
        e(t); vm.issue(R)
    e("s_cmp_ge_u32 s33, 2\ns_cbranch_scc1 g3_no0c")
    phase(0, 0, WB, [], [], None)
    e("g3_no0c:")
    for s in range(1, 12):
        e("s_waitcnt lgkmcnt(0)")
        phase(s, 0, WA, reads(s, 1, WB), [], None)
        if s < 11:
            vm.wait(s + 1)
        e("s_waitcnt lgkmcnt(0)")
        if s < 11:
            e("s_barrier")
        if stamp:
            e(f"s_memtime s[{56+2*s-2}:{57+2*s-2}]")
        ld = loads(s + R) if s + R < 12 else []
        if s + R == 12:
            ld = [f"buffer_load_dwordx4 v[{XR}:{XR+3}], v12, s[24:27], 0 offen",
                  f"buffer_load_dwordx4 v[{XR+4}:{XR+7}], v12, s[24:27], s35 offen",
                  f"buffer_load_dwordx2 v[{XR+8}:{XR+9}], v13, s[24:27], 0 offen"]
        phase(s, 1, WB, reads(s + 1, 0, WA) if s < 11 else [], ld, s + R)
    st.mid(1)

    def units(q):
        return [(0, 2 * q), (0, 2 * q + 1), (1, 2 * q), (1, 2 * q + 1)] + ([(q - 2, 8)] if q >= 2 else [])
    X, T0 = WA, WA + 20
    e("s_waitcnt vmcnt(0)\ns_nop 3\nv_mov_b32 v10, 1")
    for q in range(4):
        e(f"s_cmp_lg_u32 s33, {q}\ns_cbranch_scc1 g3_t{q}")
        ns = 0
        for d in range(4):
            if d == q:
                continue
            pre, sr = so((d * 3 + ((q - d - 1) & 3)) * 20480)
            for u, (j, T) in enumerate(units(d)):
                a = (j * 9 + T) * 4
                e(pre + f"buffer_store_dwordx4 a[{a}:{a+3}], v{14 + u//4}, s[36:39], {sr} offen offset:{(u%4)*1024} sc1")
                pre = ""; ns += 1
        U = units(q)
        for u, (j, T) in enumerate(U):
            for r in range(4):
                e(f"v_accvgpr_read_b32 v{X+4*u+r}, a{(j*9+T)*4+r}")
        for dw in range(2 * len(U)):
            e(f"v_lshlrev_b32 v26, 16, v{XR+dw}\nv_and_b32 v27, 0xffff0000, v{XR+dw}")
            e(f"v_pk_add_f32 v[{X+2*dw}:{X+2*dw+1}], v[{X+2*dw}:{X+2*dw+1}], v[26:27]")
        e("s_waitcnt vmcnt(0)\ns_mov_b64 exec, 1\nbuffer_store_dword v10, off, s[8:11], s5 sc1")
        st.mid(2)
        o = [i for i in range(4) if i != q]
        e(f"""s_mov_b32 s6, 0x40000
        g3_p{q}:
        buffer_load_dwordx4 v[4:7], off, s[8:11], s4 sc1
        s_sub_u32 s6, s6, 1
        s_cmp_eq_u32 s6, 0
        s_cbranch_scc1 g3_pd{q}
        s_waitcnt vmcnt(0)
        v_and_b32 v8, v{4+o[0]}, v{4+o[1]}
        v_and_b32 v8, v8, v{4+o[2]}
        s_nop 0
        v_readfirstlane_b32 s7, v8
        s_cmp_eq_u32 s7, 1
        s_cbranch_scc0 g3_p{q}
        g3_pd{q}:
        s_mov_b64 exec, -1""")
        st.mid(3)
        srs = []
        for sl in range(3):
            pre, sr = so((q * 3 + sl) * 20480)
            e(pre.strip())
            srs.append(sr)
        grp = [[0, 1], [2, 3]] + ([[4]] if len(U) == 5 else [])
        for g in grp:
            for sl in range(3):
                for u in g:
                    d = T0 + 20 * sl + 4 * u
                    e(f"buffer_load_dwordx4 v[{d}:{d+3}], v{14 + u//4}, s[36:39], {srs[sl]} offen offset:{(u%4)*1024} sc1")
        left = 3 * len(U)
        for gi, g in enumerate(grp):
            for sl in range(3):
                left -= len(g)
                e(f"s_waitcnt vmcnt({left})")
                for r in range(4 * g[0], 4 * g[-1] + 4, 2):
                    e(f"v_pk_add_f32 v[{X+r}:{X+r+1}], v[{X+r}:{X+r+1}], v[{T0+20*sl+r}:{T0+20*sl+r+1}]")
            for dw in range(2 * g[0], 2 * g[-1] + 2):
                e(f"v_cvt_pk_bf16_f32 v{XR+dw}, v{X+2*dw}, v{X+2*dw+1}")
        for gi, g in enumerate(grp):
            if gi < 2:
                e(f"buffer_store_dwordx4 v[{XR+4*gi}:{XR+4*gi+3}], v12, s[28:31], {['0', 's35'][gi]} offen")
            else:
                e(f"buffer_store_dwordx2 v[{XR+8}:{XR+9}], v13, s[28:31], 0 offen")
        e(f"s_branch g3_fin\ng3_t{q}:")
    e("g3_fin:")
    if stamp:
        e("s_movk_i32 s100, 16384")
        e("s_waitcnt vmcnt(0)\ns_cmp_lg_u32 s3, 0\ns_cbranch_scc1 g3_end")
        st.end(32)
        for i in range(11):
            e(f"v_mov_b32 v{32+i}, s{56+2*i}")
        e("v_mov_b32 v43, s86\ns_mov_b64 exec, 1")
        for q in range(3):
            e(f"buffer_store_dwordx4 v[{32+4*q}:{35+4*q}], v48, s[80:83], s100 offen offset:{16*q}")
    e("g3_end:\ns_endpgm")
    return k
```

```python
import sys, re
from common import *
from g1 import gen_g1
from g2a import gen_g2
from g3 import gen_g3 as g3a
from g3b import gen_g3b
def gen_g3(old=1, **kw):
    return g3a(**kw) if old else gen_g3b(**kw)
B1 = dict(pf=-1, lr=2, dpos=((8,8,9,10),(8,9,10,11)), q6=99)
def addfl(src, f1="", f2=""):
    cur = None; out = []
    for ln in src.split("\n"):
        m = re.match(r"^(g\d)_kernel:", ln)
        if m: cur = m.group(1)
        if ln.strip().startswith("buffer_store") and "sc1" not in ln and "s[80:83]" not in ln:
            fl = {"g1": f1, "g2": f2}.get(cur, "")
            if isinstance(fl, tuple):
                fl = "sc1" if any(f"s[{r}:{r+3}]" in ln for r in fl) else ""
            if fl: ln = ln + " " + fl
        out.append(ln)
    return "\n".join(out)
def full(stamp=False, k1={}, k2={}, k3={}, f1="", f2=""):
    return addfl(build([gen_g1(stamp=stamp, **{**B1, **k1}), gen_g2(stamp=stamp, **k2), gen_g3(stamp=stamp, kidx=2, **k3)]), f1, f2)
if __name__ == "__main__":
    V = dict(a=dict(), b=dict(k1=dict(p3=9)), c=dict(k1=dict(p3=9), f2="sc1"), d=dict(k1=dict(p3=9, pf=-2), f2="sc1"), e=dict(k1=dict(p3=9, pf=None), f2="sc1"))
    for n, kw in V.items():
        open(f"../cdna_kernels/c_{n}.s", "w").write(full(**kw))
```

```python
from mk import *
import sys
Z = [28]*2 + [29]*7
B2 = dict(z1s=Z, srt=4, D=4, pprio=1, cprio=0)
V = eval(sys.argv[1])
for n, kw in V.items():
    k1 = dict(p3=9, **kw.get('k1', {})); k2 = {**B2, **kw.get('k2', {})}
    print(n, gen_g1(**{**B1, **k1}).left)
    open(f"v_{n}.s", "w").write(full(stamp=True, k1=k1, k2=k2, k3=kw.get('k3', {}), f2="sc1", f1=kw.get("f1", "")))
    if len(sys.argv) > 2:
        open(f"../cdna_kernels/c_{n}.s", "w").write(full(k1=k1, k2=k2, k3=kw.get('k3', {}), f2="sc1", f1=kw.get("f1", "")))
```

```python
from common import *

STG = 18432
RING = 6
PARK = RING * STG
XST = 73728
SCR = 155648
LDS = SCR + 4608
X0, B0, B1, WIN, TMP = 16, 160, 200, 232, 248
LEAD = 4
XB = PARK
W3L = XB
NONCE = XB + 49152


def w3unit(k):
    e = k.e
    e("""s_lshl_b32 s67, s2, 2
    s_add_u32 s67, s67, s44
    s_sub_u32 s64, s67, 512
    s_cmp_ge_u32 s67, 736
    s_cselect_b32 s64, s64, s67
    s_mul_i32 s62, s64, 2850
    s_lshr_b32 s62, s62, 16
    s_mul_i32 s63, s62, 23
    s_sub_u32 s63, s64, s63
    s_lshr_b32 s64, s62, 2
    s_and_b32 s62, s62, 3
    s_sub_u32 s49, s63, 1
    s_lshr_b32 s65, s49, 2
    s_mul_i32 s65, s65, 144
    s_and_b32 s49, s49, 3
    s_lshl_b32 s49, s49, 5
    s_add_u32 s49, s49, s65
    s_mul_i32 s65, s62, 576
    s_add_u32 s49, s49, s65
    s_mov_b32 s51, 16
    s_mov_b32 s59, 4
    s_sub_u32 s66, s63, 17
    s_mul_i32 s66, s66, 288
    s_add_u32 s66, s66, s65
    s_add_u32 s66, s66, 128
    s_cmp_ge_u32 s63, 17
    s_cselect_b32 s49, s66, s49
    s_cselect_b32 s51, 144, s51
    s_sub_u32 s66, s63, 19
    s_mul_i32 s66, s66, 36
    s_mul_i32 s65, s62, 144
    s_add_u32 s66, s66, s65
    s_cmp_ge_u32 s63, 19
    s_cselect_b32 s49, s66, s49
    s_cselect_b32 s51, 20, s51
    s_cselect_b32 s65, 1, 0
    s_and_b32 s66, s62, 1
    s_mul_i32 s66, s66, 288
    s_add_u32 s66, s66, 16
    s_cmp_eq_u32 s63, 0
    s_cselect_b32 s49, s66, s49
    s_cselect_b32 s51, 36, s51
    s_cselect_b32 s59, 72, s59
    s_cselect_b32 s65, 1, s65
    s_mov_b32 s100, s65""")
    e("s_mul_i32 s49, s49, 1152\ns_mul_i32 s66, s64, 144\ns_add_u32 s49, s49, s66")
    e("s_mul_i32 s51, s51, 1152\ns_mul_i32 s59, s59, 1152")


def xloads(k):
    e = k.e
    e("""s_lshl_b32 s6, s4, 4
    s_and_b32 s7, s3, 6
    s_lshl_b32 s7, s7, 1
    s_add_u32 s6, s6, s7
    s_and_b32 s7, s3, 1
    s_add_u32 s6, s6, s7
    s_mul_i32 s6, s6, 9216
    s_add_u32 s7, s6, 4608
    s_waitcnt lgkmcnt(0)""")
    k.srd_fin(8, "x")
    for u in range(9):
        for h in range(2):
            d = X0 + 16 * u + 4 * h
            e(f"buffer_load_dwordx4 v[{d}:{d+3}], v0, s[8:11], s{6+h} offen offset:{u*128}")


def stouch(k):
    e = k.e
    for sb, key in ((12, 'win'), (68, 'wout'), (16, 'wqkv'), (60, 'wo'), (76, 'wsp')):
        e(f"s_mul_i32 s6, s3, {SIZES[key]//8}\ns_load_dword s101, s[{sb}:{sb+1}], s6")
    for q in range(3):
        e(f"s_lshl_b32 s6, s3, 21\ns_add_u32 s6, s6, {OFF_Z2N + q*(16<<20)}\ns_load_dword s101, s[20:21], s6")


def srds(k, hf):
    e = k.e
    k.srd_fin(12, "win"); k.srd_fin(16, "wqkv"); k.srd_fin(40, "dbg")
    for s in (24, 28, 32, 36, 72):
        e(f"s_mov_b64 s[{s}:{s+1}], s[20:21]")
    k.srd_fin(72, "ws", size=SZ_W3, off=OFF_W3)
    k.srd_fin(76, "wsp")
    if hf == 1:
        e("s_cmp_eq_u32 s100, 1\ns_cselect_b32 s68, s60, s68\ns_cselect_b32 s69, s61, s69")
        e(f"s_mov_b32 s70, {SIZES['wout']}\ns_cselect_b32 s70, {SIZES['wo']}, s70\ns_and_b32 s69, s69, 0xffff\ns_mov_b32 s71, 0x00020000")
    k.srd_fin(20, "ws", size=SZ_Z, off=OFF_Z2N)
    k.srd_fin(24, "ws", size=SZ_Z, off=OFF_Z1)
    k.srd_fin(28, "ws", size=SZ_Q, off=OFF_Q)
    k.srd_fin(32, "ws", size=SZ_KV, off=OFF_KV)
    k.srd_fin(36, "ws", size=SZ_ST, off=OFF_ST)


def gen_g1(stamp=False, kidx=0, rateA=(4, 3), rateB=(3, 4), nogelu=False, **opt):
    k = Kern("g1_kernel", 256, 512, LDS, 256, sgpr=102)
    st = Stamps(k, stamp, kidx)
    e = k.e
    e("s_cmp_ge_u32 s2, 256\ns_cbranch_scc1 g1_end")
    st.begin()
    k.srd(8, "x"); k.srd(12, "win"); k.srd(16, "wqkv"); k.srd(20, "ws"); k.srd(40, "dbg")
    k.srd(68, "wout"); k.srd(60, "wo"); k.srd(76, "wsp")
    e("s_memrealtime s[52:53]")
    e("v_lshrrev_b32 v2, 6, v0\nv_and_b32 v1, 63, v0")
    e("s_nop 0\nv_readfirstlane_b32 s3, v2")
    lr = opt.get('lr', 3)
    e(f"""s_and_b32 s4, s2, {(16 >> lr) - 1}
    s_lshl_b32 s4, s4, {lr}
    s_bfe_u32 s6, s2, {(lr << 16) | 3}
    s_add_u32 s4, s4, s6
    s_bfe_u32 s5, s2, {((lr - 1) << 16) | (4 - lr)}
    s_lshl_b32 s5, s5, {5 - lr}
    s_lshr_b32 s6, s2, {3 + lr}
    s_add_u32 s5, s5, s6""")
    e("""s_and_b32 s44, s3, 3
    v_lshlrev_b32 v2, 4, v1
    v_lshrrev_b32 v0, 4, v1
    v_and_b32 v4, 8, v1
    v_lshl_or_b32 v0, v4, 1, v0
    v_mul_u32_u24 v0, 1152, v0
    v_and_b32 v4, 7, v1
    v_lshl_add_u32 v0, v4, 4, v0""")
    e("""s_mul_i32 s54, s5, 288
    s_add_u32 s55, s54, 4608
    s_mul_i32 s56, s5, 72
    s_and_b32 s57, s56, 15
    s_and_b32 s56, s56, 0xfffffff0
    s_mov_b32 s47, 0xbdd2d3e8
    s_mov_b32 s50, 0x3f803f80
    s_lshl_b32 s58, s4, 2
    s_add_u32 s58, s58, s44""")
    e("s_cmp_ge_u32 s3, 4\ns_cbranch_scc1 g1_pathB")
    info = {}
    LB = None
    saved = k.L
    bodies = {}
    for hf in (1, 0):
        k.L = []
        body(k, st, hf, info, rateA if hf == 0 else rateB, stamp, nogelu, opt)
        bodies[hf] = k.L
    k.L = saved + bodies[0] + ["g1_pathB:"] + bodies[1]
    e("g1_end:\ns_endpgm")
    return k


def body(k, st, hf, info, rate, stamp, nogelu, opt):
    e = k.e
    pf = opt.get('pf', -1)
    w3s = opt.get('w3s', 23)
    marks = opt.get('marks', ['p', 'm', 'x', 9])
    sw = opt.get('sw', 0)

    def mark(ev):
        if ev in marks:
            st.mid(marks.index(ev))
    vm = Trk(k, "vmcnt", 63)
    lg = Trk(k, "lgkmcnt", 15)

    def xl():
        mark('j')
        xloads(k)
        mark('l')
        for u in range(9):
            for h in range(2):
                vm.issue(("x", u))
    xf = opt.get('xf', 1) or hf == 0
    if xf:
        xl()
        if opt.get('stouch'):
            stouch(k)
    if hf == 1:
        w3unit(k)
    if xf:
        srds(k, hf)
    npc = 2 + hf
    if hf == 0:
        e("s_lshl_b32 s6, s44, 7")
    else:
        e("s_mul_i32 s6, s44, 160\ns_add_u32 s6, s6, 512")
    e("s_lshl_b32 s46, s6, 4")
    e(f"s_cmp_eq_u32 s5, {opt.get('q6', 7)}\ns_cselect_b32 s7, 5, {opt.get('q6d', 4)}")
    T = TMP
    for p in range(npc):
        e(f"""v_add_u32 v{T}, s6, v1
        v_add_u32 v{T}, {64*p}, v{T}
        v_mul_u32_u24 v{T+1}, 3641, v{T}
        v_lshrrev_b32 v{T+1}, 16, v{T+1}
        v_mul_u32_u24 v{T+2}, 18, v{T+1}
        v_sub_u32 v{T+2}, v{T}, v{T+2}
        v_and_b32 v{T+3}, 0x23, v{T+1}
        v_and_b32 v{T+4}, 12, v{T+1}
        v_lshl_or_b32 v{T+3}, v{T+4}, 1, v{T+3}
        v_and_b32 v{T+4}, 16, v{T+1}
        v_lshrrev_b32 v{T+4}, 2, v{T+4}
        v_or_b32 v{T+3}, v{T+3}, v{T+4}
        v_mul_u32_u24 v{7+p}, 9216, v{T+3}
        v_lshl_add_u32 v{7+p}, v{T+2}, 4, v{7+p}
        v_mul_u32_u24 v{10+p}, 3456, v{T+3}
        v_mul_u32_u24 v{T+4}, 43, v{T+2}
        v_lshrrev_b32 v{T+4}, 8, v{T+4}
        v_mul_u32_u24 v{T+5}, 6, v{T+4}
        v_sub_u32 v{T+5}, v{T+2}, v{T+5}
        v_min_u32 v{T+5}, s7, v{T+5}
        v_mul_u32_u24 v{T+4}, 1152, v{T+4}
        v_lshl_add_u32 v{T+4}, v{T+5}, 4, v{T+4}
        v_add_u32 v{10+p}, v{10+p}, v{T+4}""")
        if p:
            e(f"v_subrev_u32 v{7+p}, {1024*p}, v{7+p}\nv_subrev_u32 v{10+p}, {1024*p}, v{10+p}")

    def dma_setup(s):
        ps, q = divmod(s, 9)
        base, stride = [("s55", 589824), ("s54", 589824), ("s56", 221184)][ps]
        e(f"s_add_u32 s45, {base}, {q*stride}\ns_add_u32 m0, s46, {(s % RING)*STG}")

    def dma_piece(s, p):
        vo, srd = (7 + p, "s[12:15]") if s < 18 else (10 + p, "s[16:19]")
        if p == 2:
            e("s_mov_b32 exec_hi, 0")
        else:
            e("s_nop 0")
        if not (opt.get('x_nodma') and s >= LEAD):
            e(f"buffer_load_dwordx4 v{vo}, {srd}, s45 offen offset:{1024*p} lds")
            vm.issue(("dma", s))
        if p == 2:
            e("s_mov_b32 exec_hi, -1")

    F = B1 if hf == 0 else B0

    def wsp_pf(i=0, n=1):
        vm.wait('pf')
        e(f"s_lshl_b32 s100, s2, 3\ns_add_u32 s100, s100, s3\ns_lshl_b32 s100, s100, 12")
        if n > 1:
            m = ((1 << (64 // n)) - 1) << (i * 64 // n)
            e(f"s_mov_b32 exec_lo, {m & 0xffffffff}\ns_mov_b32 exec_hi, {m >> 32}")
        e("v_lshlrev_b32 v0, 6, v1")
        e(f"buffer_load_dword v0, v0, s[76:79], s100 offen"); vm.issue('pf')
        if n > 1:
            e("s_mov_b64 exec, -1")

    LR = opt.get('lr', 3)
    RW = 72 >> LR

    def lanes(n):
        e(f"s_mov_b32 exec_lo, {((1 << n) - 1) & 0xffffffff}\ns_mov_b32 exec_hi, {((1 << n) - 1) >> 32}")

    def win_pf(base):
        vm.wait('pf')
        e(f"""s_and_b32 s100, s4, {(1 << LR) - 1}
        s_lshl_b32 s100, s100, 3
        s_add_u32 s100, s100, s3
        s_mul_i32 s100, s100, {RW*9216}
        s_and_b32 s101, {base}, 0xffffff80
        s_add_u32 s100, s100, s101
        v_mul_u32_u24 v0, 43, v1
        v_lshrrev_b32 v0, 7, v0
        v_mul_u32_u24 v0, 8832, v0
        v_lshl_add_u32 v0, v1, 7, v0""")
        lanes(3 * RW)
        e("buffer_load_dword v0, v0, s[12:15], s100 offen\ns_mov_b64 exec, -1"); vm.issue('pf')

    def qkv_pf():
        vm.wait('pf')
        e(f"""s_and_b32 s100, s4, {(1 << LR) - 1}
        s_lshl_b32 s100, s100, 3
        s_add_u32 s100, s100, s3
        s_mul_i32 s100, s100, {3*RW*1152}
        s_add_u32 s100, s100, s56
        v_mul_u32_u24 v0, 1152, v1""")
        lanes(3 * RW)
        e("buffer_load_dword v15, v0, s[16:19], s100 offen"); vm.issue('pf')
        e("buffer_load_dword v0, v0, s[16:19], s100 offen offset:64\ns_mov_b64 exec, -1"); vm.issue('pf')

    def w3dma():
        U = WIN
        for p in range(5):
            e(f"""v_add_u32 v{U}, {64*p}, v1
            v_mul_u32_u24 v{U+1}, 7282, v{U}
            v_lshrrev_b32 v{U+1}, 16, v{U+1}
            v_mul_u32_u24 v{U+2}, 9, v{U+1}
            v_sub_u32 v{U+2}, v{U}, v{U+2}
            v_lshlrev_b32 v{U+2}, 4, v{U+2}
            v_and_b32 v{U}, 3, v{U+1}
            v_mul_u32_u24 v{U}, 1152, v{U}
            v_add_u32 v{U+2}, v{U+2}, v{U}
            v_bfe_u32 v{U}, v{U+1}, 2, 2
            v_mul_u32_u24 v{U}, s59, v{U}
            v_add_u32 v{U+2}, v{U+2}, v{U}
            v_bfe_u32 v{U}, v{U+1}, 4, 1
            v_mul_u32_u24 v{U}, s51, v{U}
            v_add_u32 v{F+12+4*p}, v{U+2}, v{U}""")

    def w3ld():
        for p in range(5):
            if p == 4:
                e("s_mov_b32 exec_hi, 0")
            e(f"buffer_load_dwordx4 v[{F+12+4*p}:{F+15+4*p}], v{F+12+4*p}, s[68:71], s49 offen"); vm.issue('w3')
        e("s_mov_b32 exec_hi, -1")

    def touch():
        e("s_mov_b64 exec, 1")
        e("s_lshl_b32 s6, s4, 4\ns_add_u32 s6, s6, s5\ns_lshl_b32 s6, s6, 2\ns_add_u32 s6, s6, s44\ns_mul_i32 s6, s6, 9216")
        e(f"buffer_load_dword v{F+12}, off, s[24:27], s6"); vm.issue()
        e("s_lshl_b32 s6, s5, 6\ns_add_u32 s6, s6, s58\ns_mul_i32 s6, s6, 9216")
        e(f"buffer_load_dword v{F+13}, off, s[20:23], s6"); vm.issue()
        e("s_lshl_b32 s6, s5, 7\ns_add_u32 s6, s6, s58\ns_mul_i32 s7, s6, 1536\ns_mul_i32 s6, s6, 2688")
        e(f"buffer_load_dword v{F+14}, off, s[28:31], s7"); vm.issue()
        e(f"buffer_load_dword v{F+15}, off, s[32:35], s6"); vm.issue()
        e("s_lshl_b32 s6, s58, 13\ns_mul_i32 s7, s67, 4608")
        e(f"buffer_load_dword v{F+16}, off, s[36:39], s6"); vm.issue()
        e(f"buffer_load_dword v{F+17}, off, s[72:75], s7"); vm.issue()
        e("s_mov_b64 exec, -1")

    def dma_stage(s):
        dma_setup(s)
        for p in range(npc):
            dma_piece(s, p)

    if opt.get('p1'):
        win_pf('s55')
    dpos = opt.get('dpos', ((8, 8, 8, 8), (-1, -1, 4, 8)))[hf]
    NUP = opt.get('nup', 5)
    if hf == 1 and w3s:
        w3dma()
    e(f"""v_lshrrev_b32 v{T}, 4, v1
    v_and_b32 v{T+1}, 7, v1
    v_and_or_b32 v{T+2}, v1, 8, v{T}
    s_and_b32 s6, s3, 1
    s_lshl_b32 s6, s6, 2
    v_or_b32 v{T+2}, s6, v{T+2}
    v_xor_b32 v{T+2}, v{T+2}, v{T+1}
    v_lshlrev_b32 v{T+2}, 4, v{T+2}
    v_lshl_add_u32 v{T+2}, v{T+1}, 8, v{T+2}
    s_lshr_b32 s6, s3, 1
    s_lshl_b32 s6, s6, 12
    s_add_u32 s6, s6, {XB}
    v_add_u32 v{F}, s6, v{T+2}
    v_subrev_u32 v{F+1}, {2*STG}, v{F}
    v_lshrrev_b32 v{T}, 4, v1
    v_and_b32 v{T+1}, 15, v1
    v_xor_b32 v{T+1}, v{T+1}, v{T}
    v_lshlrev_b32 v{T+1}, 4, v{T+1}
    v_lshl_add_u32 v{T+1}, v{T}, 8, v{T+1}
    s_lshl_b32 s6, s44, 12
    s_add_u32 s6, s6, {XB}
    v_add_u32 v{F+2}, s6, v{T+1}
    v_xor_b32 v{F+3}, 64, v{F+2}
    v_subrev_u32 v{F+5}, {2*STG}, v{F+2}
    v_subrev_u32 v{F+7}, {2*STG}, v{F+3}
    v_lshrrev_b32 v{T}, 2, v1
    v_mul_u32_u24 v{T}, 288, v{T}
    v_and_b32 v{T+1}, 3, v1
    v_lshl_add_u32 v3, v{T+1}, 3, v{T}
    v_add_u32 v4, {3*STG}, v3
    s_add_u32 s6, s57, {32 if hf == 0 else 224}
    v_add_u32 v5, s6, v{T}""")
    if hf == 0:
        e(f"v_and_b32 v{T+1}, 1, v1\nv_mul_u32_u24 v{T+1}, 96, v{T+1}\nv_add_u32 v5, v5, v{T+1}")
    e(f"""v_add_u32 v6, {3*STG}, v5
    s_mul_i32 s6, s44, 9216
    s_add_u32 s6, s6, {PARK + hf*5120}
    v_lshlrev_b32 v13, 2, v1
    v_add_u32 v13, s6, v13""")
    WU, WB = F + 32, F + 12
    if hf == 1 and w3s:
        U = WU
        e(f"""v_lshrrev_b32 v{U}, 2, v1
        v_mul_u32_u24 v{U}, 144, v{U}
        s_mul_i32 s6, s44, 4608
        s_add_u32 s6, s6, {W3L}
        v_add_u32 v{U}, s6, v{U}
        v_and_b32 v{U+1}, 1, v1
        v_lshl_add_u32 v{U+1}, v{U+1}, 3, v{U}
        v_and_b32 v{U+2}, 3, v1
        v_lshl_add_u32 v{U}, v{U+2}, 4, v{U}
        v_lshrrev_b32 v{U+2}, 4, v1
        v_lshlrev_b32 v{U+2}, 3, v{U+2}
        v_and_b32 v{U+3}, 7, v1
        v_add_u32 v{U+2}, v{U+2}, v{U+3}
        v_lshlrev_b32 v{U+2}, 4, v{U+2}""")
    if not xf:
        e("s_waitcnt lgkmcnt(0)")
        srds(k, hf)
        xl()
    for s in range(LEAD):
        if dpos[s] == -1:
            dma_stage(s)
    mark('i')
    S, Q = WIN + 12, WIN + 14
    for u in range(9):
        vm.wait(("x", u))
        mark(('x', u))
        for d in range(4):
            for h in range(2):
                r = X0 + 16 * u + 4 * h + d
                first = (u == 0 and d == 0)
                e(f"v_dot2_f32_bf16 v{S+h}, v{r}, s50, {0 if first else f'v{S+h}'}")
                e(f"v_dot2_f32_bf16 v{Q+h}, v{r}, v{r}, {0 if first else f'v{Q+h}'}")
        for s in range(LEAD):
            if dpos[s] == u:
                dma_stage(s)
    mark('x')
    if pf == -1:
        wsp_pf()
    e("s_nop 2")
    for ctl in ("quad_perm:[1,0,3,2]", "quad_perm:[2,3,0,1]", "row_half_mirror"):
        for r in range(4):
            e(f"v_add_f32_dpp v{S+r}, v{S+r}, v{S+r} {ctl} row_mask:0xf bank_mask:0xf")
    R = F + 4
    for h in range(2):
        e(f"v_mul_f32 v{S+h}, 0x3ae38e39, v{S+h}")
        e(f"v_mul_f32 v{Q+h}, 0x3ae38e39, v{Q+h}")
    for h in range(2):
        e(f"v_fma_f32 v{Q+h}, -v{S+h}, v{S+h}, v{Q+h}")
    for h in range(2):
        e(f"v_add_f32 v{Q+h}, 0x3727c5ac, v{Q+h}")
    for h in range(2):
        e(f"v_rsq_f32 v{R+4*h}, v{Q+h}")
    e("s_nop 0")
    for h in range(2):
        e(f"v_mul_f32 v{R+4*h+2}, v{S+h}, v{R+4*h}")

    def norm(h, u, pk):
        a = X0 + 16 * u + 4 * h
        L = []
        for d in range(4):
            L += [f"v_lshlrev_b32 v{T+2*d}, 16, v{a+d}", f"v_and_b32 v{T+2*d+1}, 0xffff0000, v{a+d}"]
        for d in range(4):
            if pk:
                L.append(f"v_pk_fma_f32 v[{T+2*d}:{T+2*d+1}], v[{T+2*d}:{T+2*d+1}], v[{R+4*h}:{R+4*h+1}], v[{R+4*h+2}:{R+4*h+3}] op_sel_hi:[1,0,0] neg_lo:[0,0,1] neg_hi:[0,0,1]")
            else:
                L += [f"v_fma_f32 v{T+2*d+q}, v{T+2*d+q}, v{R+4*h}, -v{R+4*h+2}" for q in range(2)]
        for d in range(4):
            L.append(f"v_cvt_pk_bf16_f32 v{a+d}, v{T+2*d}, v{T+2*d+1}")
        if opt.get('x_nonorm') and not pk:
            return [lambda: None] * len(L)
        return L

    xdone = set()

    def xw(h, u):
        a = X0 + 16 * u + 4 * h
        if not opt.get('x_nods'):
            ad, o = (F + 1, u * STG) if u < 2 else (F, (u % 3) * 16384)
            e(f"ds_write_b128 v{ad}, v[{a}:{a+3}] offset:{o+2048*h}")
            lg.issue(('xw', u))
        xdone.add((u, h))

    def xr(t, j):
        d = X0 + 8 * t + 4 * j
        if opt.get('x_nord'):
            return
        u = t >> 1
        ad, o = (F + 5 + 2 * (t & 1), u * STG) if u < 2 else (F + 2 + (t & 1), (u % 3) * 16384)
        e(f"ds_read_b128 v[{d}:{d+3}], v{ad} offset:{o+j*2048+(t&1)*1024}")
        lg.issue(('xr', t))

    if opt.get('stouch'):
        e("s_waitcnt lgkmcnt(0)")
    for u in range(NUP):
        for h in range(2):
            for i in norm(h, u, True):
                e(i)
            xw(h, u)
        for s in range(LEAD):
            if dpos[s] == 9 + u:
                dma_stage(s)
    mark('p')

    if hf == 0:
        P = [[(32*t, 0, B0 + 8*t, 'N') for t in range(5)],
             [(32*t, 0, B1 + 8*t, 'T') for t in range(4)],
             [(0, 0, B0, 'T'), (40, 0, B0+8, 'T'), (96, 0, B0+16, 'T'), (136, 0, B0+24, 'T'), (0, 1, B0+32, 'T')]]
        z2t, z1t = list(range(5)), list(range(4))
        BZ2, BZ1 = B0, B1
    else:
        P = [[(32*(5+t), 0, B1 + 8*t, 'N') for t in range(4)],
             [(32*(4+t), 0, B0 + 8*t, 'T') for t in range(5)],
             [(192, 0, B1, 'N'), (232, 0, B1+8, 'N'), (0, 1, B1+16, 'N')]]
        z2t, z1t = list(range(5, 9)), list(range(4, 9))
        BZ2, BZ1 = B1, B0
    frags = [(s, kk, ti) for s in range(27) for kk in range(2) for ti in range(len(P[s // 9]))]
    NF = len(frags)
    cur = dict(stage=-1)
    timed = {}

    def rd(n):
        s, kk, ti = frags[n]
        if kk == 0 and ti == 0:
            vm.wait(("dma", s))
            if s < 8:
                assert (s + 1, 0) in xdone and (s + 1, 1) in xdone, (hf, s)
                lg.wait(('xw', s + 1))
            if 0 < s < 9:
                lg.wait(('xr', 2 * s + 1))
            if s == 9:
                lg.wait('w3r')
            if not (opt.get('x_nobar') and s % 9 > 0):
                e("s_barrier")
            cur['stage'] = s
            mark(s)
            if s == 0:
                xr(0, 0); xr(0, 1)
            if s < 8:
                for q in range(4):
                    timed.setdefault(max(0, n - 3) + 1 + q + hf * 0, []).append(lambda q=q, s=s: xr(2 * s + 2 + q // 2, q & 1))
            if 'bw' in info and hf == 1 and 'bvis' not in info and not lg.pending('bw'):
                info['bvis'] = s
            if s == 18:
                e("v_add_u32 v3, s57, v3\nv_add_u32 v4, s57, v4")
            for q, sd in enumerate({0: [], 1: [4, 5]}.get(s, [s + LEAD])):
                for p in range(npc if sd < 27 else 0):
                    def f(p=p, sd=sd):
                        if p == 0:
                            dma_setup(sd)
                        dma_piece(sd, p)
                    timed.setdefault(n - 2 + (npc * q + p if s == 1 else 2 * p), []).append(f)
        col, kind, _, _ = P[s // 9][ti]
        b = s % RING
        a = (3 if kind == 0 else 5) + (1 if b >= 3 else 0)
        o = (b % 3) * STG + kk * 32 * 288 + col
        w = WIN + 4 * (n % 4)
        e(f"ds_read_b64_tr_b16 v[{w}:{w+1}], v{a} offset:{o}")
        e(f"ds_read_b64_tr_b16 v[{w+2}:{w+3}], v{a} offset:{o+16*288}")
        lg.issue(None); lg.issue(("f", n))
        if n == 2:
            xr(1, 0); xr(1, 1)

    fill = []

    def gelu4(acc):
        n = len(acc)
        L = []
        L += [f"v_fmaak_f32 v{T+i}, v{a}, v{a}, 0x41b2e92f" for i, a in enumerate(acc)]
        L += [f"v_mul_f32 v{T+4+i}, s47, v{a}" for i, a in enumerate(acc)]
        L += [f"v_mul_f32 v{T+i}, v{T+i}, v{T+4+i}" for i in range(n)]
        L += [f"v_exp_f32 v{T+i}, v{T+i}" for i in range(n)]
        L += [f"v_add_f32 v{T+i}, 1.0, v{T+i}" for i in range(n)]
        L += [f"v_rcp_f32 v{T+i}, v{T+i}" for i in range(n)]
        L += [f"v_mul_f32 v{T+4+i}, v{a}, v{T+i}" for i, a in enumerate(acc)]
        return L

    def dsop(txt, tag=None):
        def f():
            e(txt); lg.issue(tag)
        return f

    def vmop(txt, tag=None):
        def f():
            e(txt); vm.issue(tag)
        return f

    def z2fill():
        L = []
        nt = len(z2t)
        for j in range(2):
            for rp in range(2):
                for p0 in range(0, nt, 2):
                    tl = [t for t in (p0, p0 + 1) if t < nt]
                    acc = [BZ2 + 8*t + 4*j + 2*rp + r for t in tl for r in range(2)]
                    L += gelu4(acc)
                    for i, t in enumerate(tl):
                        L.append(f"v_cvt_pk_bf16_f32 v{T+2*i}, v{T+4+2*i}, v{T+5+2*i}")
                    for r in range(2):
                        sS = BZ2 + 4*j + 2*rp + r
                        sQ = sS + 8
                        if p0 == 0:
                            L += [f"v_add_f32 v{sS}, v{T+4+r}, v{T+6+r}", f"v_mul_f32 v{sQ}, v{T+4+r}, v{T+4+r}"]
                        else:
                            L += [f"v_add_f32 v{sS}, v{sS}, v{T+4+r}", f"v_fmac_f32 v{sQ}, v{T+4+r}, v{T+4+r}"]
                    for i, t in enumerate(tl):
                        L.append(dsop(f"ds_write_b32 v13, v{T+2*i} offset:{(t*4 + 2*j + rp)*256}"))
                    if len(tl) == 2:
                        for r in range(2):
                            sS = BZ2 + 4*j + 2*rp + r
                            sQ = sS + 8
                            if p0:
                                L.append(f"v_add_f32 v{sS}, v{sS}, v{T+6+r}")
                            L.append(f"v_fmac_f32 v{sQ}, v{T+6+r}, v{T+6+r}")
        L.append("s_nop 1")
        for bm, src in (("0x3", 0), ("0xc", 4)):
            for q in range(2):
                for r in range(4):
                    a = BZ2 + 8*q + r
                    L.append(f"v_add_f32_dpp v{a}, v{a+src}, v{a+src} row_mirror row_mask:0xf bank_mask:{bm}")
        for bm, src in (("0x5", 0), ("0xa", 2)):
            for q in range(2):
                for r in range(2):
                    a = BZ2 + 8*q + r
                    L.append(f"v_add_f32_dpp v{a}, v{a+src}, v{a+src} row_half_mirror row_mask:0xf bank_mask:{bm}")
        for ctl in ("quad_perm:[1,0,3,2]", "quad_perm:[2,3,0,1]"):
            for q in range(2):
                for r in range(2):
                    a = BZ2 + 8*q + r
                    L.append(f"v_add_f32_dpp v{a}, v{a}, v{a} {ctl} row_mask:0xf bank_mask:0xf")
        L.append("s_mov_b32 s60, 0xaaaaaaaa\ns_mov_b32 s61, 0xaaaaaaaa")
        L.append(f"s_lshl_b32 s6, s44, 9\ns_add_u32 s6, s6, {SCR+256}")
        L.append(f"v_lshlrev_b32 v{T+7}, 3, v1")
        L.append(f"v_add_u32 v{T+7}, s6, v{T+7}")
        if hf == 1:
            L.append(f"v_cndmask_b32 v{T}, v{BZ2}, v{BZ2+1}, s[60:61]")
            L.append(f"v_cndmask_b32 v{T+1}, v{BZ2+8}, v{BZ2+9}, s[60:61]")
            def f():
                e(f"ds_write_b64 v{T+7}, v[{T}:{T+1}]"); lg.issue('bw'); info['bw'] = True
            L.append(f)
        else:
            L.append(f"v_cndmask_b32 v{T}, v{BZ2}, v{BZ2+1}, s[60:61]")
            L.append(f"v_cndmask_b32 v{T+2}, v{BZ2+8}, v{BZ2+9}, s[60:61]")
            L.append(("hold", info['bvis']))
            L.append(dsop(f"ds_read_b64 v[{T+4}:{T+5}], v{T+7}", 'br'))
            L.append(f"v_lshrrev_b32 v{T+6}, 2, v1")
            L.append(f"v_and_b32 v{T+7}, 1, v1")
            L.append(f"v_lshl_or_b32 v{T+6}, v{T+6}, 1, v{T+7}")
            L.append(f"v_lshlrev_b32 v{T+6}, 4, v{T+6}")
            L.append(f"v_mov_b32 v{T+1}, s48")
            L.append(f"v_mov_b32 v{T+3}, s48")
            L.append("s_lshl_b32 s6, s58, 4\ns_add_u32 s6, s6, s5\ns_lshl_b32 s6, s6, 9")
            L.append(("skip", 4))
            L.append(lambda: lg.wait('br'))
            L.append(f"v_add_f32 v{T}, v{T}, v{T+4}")
            L.append(f"v_add_f32 v{T+2}, v{T+2}, v{T+5}")
            L.append(vmop(f"s_mov_b32 exec_lo, 0x33333333\ns_mov_b32 exec_hi, 0x33333333\n"
                          f"buffer_store_dwordx4 v[{T}:{T+3}], v{T+6}, s[36:39], s6 offen sc1\ns_mov_b64 exec, -1\ns_nop 0"))
        return L

    def z1fill():
        L = []
        L.append(f"s_lshl_b32 s6, s4, 4\ns_add_u32 s6, s6, s5\ns_lshl_b32 s6, s6, 2\ns_add_u32 s6, s6, s44\n"
                 f"s_mul_i32 s6, s6, 9216\ns_add_u32 s62, s6, {z1t[0]*1024}\ns_add_u32 s63, s62, 4096")
        for i, t in enumerate(z1t):
            b = BZ1 + 8 * i
            for j in range(2):
                L += gelu4([b + 4*j + r for r in range(4)])
                L.append(f"v_cvt_pk_bf16_f32 v{b+2*j}, v{T+4}, v{T+5}")
                L.append(f"v_cvt_pk_bf16_f32 v{b+2*j+1}, v{T+6}, v{T+7}")
            if not opt.get('nost'):
                L.append(vmop(f"buffer_store_dwordx4 v[{b}:{b+3}], v2, s[24:27], {'s62' if i < 4 else 's63'} offen offset:{(i%4)*1024}"))
        return L

    skip = [0]

    def pump(n):
        while n > 0 and fill:
            if skip[0] > 0:
                skip[0] -= 1
                return
            it = fill[0]
            if isinstance(it, tuple):
                if it[0] == "hold":
                    if cur['stage'] < it[1]:
                        return
                    fill.pop(0)
                    continue
                skip[0] = it[1]
                fill.pop(0)
                continue
            fill.pop(0)
            it() if callable(it) else e(it)
            n -= 1

    def flush():
        skip[0] = 0
        while fill:
            assert not (isinstance(fill[0], tuple) and fill[0][0] == "hold" and cur['stage'] < fill[0][1])
            skip[0] = 0
            pump(1000)

    GS = X0

    def gather():
        e("s_lshl_b32 s6, s58, 13\ns_add_u32 s7, s6, 4096")
        for q in range(8):
            e(f"buffer_load_dwordx4 v[{GS+4*q}:{GS+4*q+3}], v2, s[36:39], s{6+q//4} offen offset:{(q%4)*1024} sc1")
            vm.issue('gs')

    for u in range(NUP, 9):
        fill += norm(0, u, False) + [("hold", u - 3), lambda u=u: xw(0, u)] + norm(1, u, False) + [lambda u=u: xw(1, u)]
    if opt.get('prio'):
        e(f"s_setprio {opt['prio'][hf]}")
    for n in range(3):
        rd(n)
    if pf == -2:
        wsp_pf()
    if hf == 0:
        e("s_cmp_lg_u32 s3, 0\ns_cbranch_scc1 g1_nononce")
        e("""s_or_b32 s52, s52, 1
        s_lshl_b32 s6, s4, 4
        v_mov_b32 v14, s52
        v_mov_b32 v15, 0
        s_mov_b64 exec, 1
        buffer_atomic_cmpswap v[14:15], off, s[40:43], s6 sc0 sc1
        s_mov_b64 exec, -1
        g1_nononce:""")
    if hf == 1 and w3s and opt.get('w3p', -1) == -1:
        w3ld()
    for n in range(NF):
        s, kk, ti = frags[n]
        ps = s // 9
        if kk == 0 and ti == 0 and s % 9 == 0 and ps > 0:
            flush()
            if not nogelu:
                fill += [("skip", 4)] + (z2fill() if ps == 1 else z1fill())
        if kk == 0 and ti == 0 and s == 5:
            if hf == 0:
                e(f"""s_cmp_lg_u32 s3, 0
                s_cbranch_scc1 g1_nn2
                v_readfirstlane_b32 s6, v14
                s_cmp_eq_u32 s6, 0
                s_cselect_b32 s6, s52, s6
                v_mov_b32 v14, s6
                v_mov_b32 v15, {NONCE}
                ds_write_b32 v15, v14
                s_waitcnt lgkmcnt(0)
                g1_nn2:""")
        if kk == 0 and ti == 0 and s == 7:
            e(f"v_mov_b32 v15, {NONCE}\nds_read_b32 v14, v15"); lg.issue('nonce')
        if kk == 0 and ti == 0 and s == 8:
            lg.wait('nonce')
            e("v_readfirstlane_b32 s48, v14")
        if kk == 0 and ti == 0 and s == 25:
            gather()
        if hf == 1 and w3s and (s, kk, ti) == (opt.get('w3p', -1), 1, 0):
            w3ld()
        if kk == 0 and ti == 1 and s == opt.get('p2'):
            win_pf('s54')
        if kk == 0 and ti == 1 and s == opt.get('p3'):
            assert s >= 9
            qkv_pf()
        if kk == 0 and ti == 1 and s == pf:
            wsp_pf()
        if kk == 0 and ti == 1 and isinstance(pf, tuple) and s - hf in pf:
            wsp_pf(pf.index(s - hf), len(pf))
        n8 = frags.index((8, 0, 0))
        if hf == 1 and w3s and n == n8 - 7:
            assert cur['stage'] >= 7
            vm.wait('w3')
            e(f"s_mul_i32 s6, s44, 4608\ns_add_u32 s6, s6, {W3L}\nv_add_u32 v{WU+3}, s6, v2")
        if hf == 1 and w3s and n8 - 7 <= n < n8 - 2:
            p = n - (n8 - 7)
            if p == 4:
                e("s_mov_b32 exec_hi, 0")
            e(f"ds_write_b128 v{WU+3}, v[{WB+4*p}:{WB+4*p+3}] offset:{1024*p}"); lg.issue()
            if p == 4:
                e("s_mov_b32 exec_hi, -1")
        if hf == 1 and w3s and n == n8:
            for t in range(4):
                for hh in range(2):
                    e(f"ds_read_b64_tr_b16 v[{WB+4*t+2*hh}:{WB+4*t+2*hh+1}], v{WU} offset:{hh*16*144 + 64*(t>>1) + 8*(t&1)}")
                    lg.issue('w3r')
            for hh in range(2):
                e(f"ds_read_b64_tr_b16 v[{WB+16+2*hh}:{WB+16+2*hh+1}], v{WU+1} offset:{hh*16*144 + 128}")
                lg.issue('w3r')
        if hf == 1 and w3s and n == n8 + 4:
            lg.wait('w3r')
            e("s_cmp_ge_u32 s67, 736\ns_cbranch_scc1 g1_now3")
            e("s_mul_i32 s6, s67, 4608\ns_add_u32 s7, s6, 4096")
            for t in range(4):
                e(f"buffer_store_dwordx4 v[{WB+4*t}:{WB+4*t+3}], v2, s[72:75], s6 offen offset:{1024*t}")
            e("s_mov_b32 exec_lo, 0x00ff00ff\ns_mov_b32 exec_hi, 0x00ff00ff")
            e(f"buffer_store_dwordx4 v[{WB+16}:{WB+19}], v{WU+2}, s[72:75], s7 offen")
            e("s_mov_b64 exec, -1\ng1_now3:")
        if ps == 0:
            lg.wait(('xr', 2 * s + kk))
        lg.wait(("f", n))
        _, _, acc, ori = P[ps][ti]
        t = (s % 9) * 2 + kk
        w = WIN + 4 * (n % 4)
        for j in range(2):
            x = X0 + 8 * t + 4 * j
            c = acc + 4 * j
            A, B = (x, w) if ori == 'N' else (w, x)
            src = "0" if t == 0 else f"v[{c}:{c+3}]"
            e(f"v_mfma_f32_16x16x32_bf16 v[{c}:{c+3}], v[{A}:{A+3}], v[{B}:{B+3}], {src}")
            if j == 0 and n + 3 < NF:
                pass
            pump(rate[ps - 1] if ps else opt.get('r0', ((1, 2), (2, 2)))[hf][j])
        if n + 3 < NF:
            rd(n + 3) if False else None
        for f in timed.pop(n, []):
            f()
        if n + 3 < NF:
            rd(n + 3)
    assert not timed, timed.keys()
    mark('m')
    flush()
    PZ = X0 + 48
    nt = len(z2t)
    for t in range(nt):
        for q in range(2):
            e(f"ds_read2st64_b32 v[{PZ+4*t+2*q}:{PZ+4*t+2*q+1}], v13 offset0:{t*4+2*q} offset1:{t*4+2*q+1}")
    e("s_nop 4")
    if hf == 0:
        e(f"v_mul_u32_u24 v{T+7}, 12, v1")
        e(f"s_lshl_b32 s6, s5, 7\ns_add_u32 s6, s6, s58\ns_mul_i32 s62, s6, 1536\ns_add_u32 s63, s62, {64*1536}")
        e(f"s_mul_i32 s64, s6, 2688\ns_add_u32 s65, s64, {64*2688}")
        e("s_mov_b32 s60, -1\ns_mov_b32 s61, 0")
        TT = B0 + 32
        for j in range(2):
            for hh in range(2):
                e(f"v_cvt_pk_bf16_f32 v{T+2*j+hh}, v{TT+4*j+2*hh}, v{TT+4*j+2*hh+1}")
        for ti in range(4):
            for j in range(2):
                c = B0 + 8 * ti + 4 * j
                e(f"v_cvt_pk_bf16_f32 v{c}, v{c}, v{c+1}\nv_cvt_pk_bf16_f32 v{c+1}, v{c+2}, v{c+3}")
                if ti >= 2:
                    e(f"v_mov_b32 v{c+2}, v{T+2*j+(ti&1)}")
                else:
                    e(f"v_mov_b32 v{c+2}, 0\nv_cndmask_b32 v{c+3}, 0, v{T+2*j+ti}, s[60:61]")
        for j in range(2):
            for ti in range(2):
                c = B0 + 8 * ti + 4 * j
                e(f"v_permlane16_swap_b32 v{c+2}, v{c+3}")
        for ti in (2, 3, 0, 1):
            for j in range(2):
                c = B0 + 8 * ti + 4 * j
                srd = "s[28:31]" if ti < 2 else "s[32:35]"
                e(f"buffer_store_dwordx3 v[{c}:{c+2}], v{T+7}, {srd}, s{62+ti} offen offset:{768*j}")
                vm.issue()
    else:
        e(f"s_lshl_b32 s6, s5, 7\ns_add_u32 s6, s6, s58\ns_mul_i32 s64, s6, 2688\ns_add_u32 s65, s64, {64*2688}")
        e(f"""v_bfe_u32 v{T+7}, v1, 1, 1
        v_mul_u32_u24 v{T+7}, {64*2688}, v{T+7}
        v_and_b32 v{T+6}, 1, v1
        v_lshl_add_u32 v{T+7}, v{T+6}, 6, v{T+7}
        v_lshrrev_b32 v{T+6}, 4, v1
        v_lshl_add_u32 v{T+7}, v{T+6}, 4, v{T+7}""")
        for ti in range(3):
            c = B1 + 8 * ti
            for q in range(4):
                e(f"v_cvt_pk_bf16_f32 v{c+q}, v{c+2*q}, v{c+2*q+1}")
        for ti in range(2):
            c = B1 + 8 * ti
            e(f"buffer_store_dwordx4 v[{c}:{c+3}], v2, s[32:35], s{64+ti} offen offset:1536")
            vm.issue()
        c = B1 + 16
        e("s_mov_b32 exec_lo, 0x000f000f\ns_mov_b32 exec_hi, 0x000f000f")
        e(f"buffer_store_dwordx4 v[{c}:{c+3}], v{T+7}, s[32:35], s64 offen offset:2560")
        vm.issue()
        e("s_mov_b64 exec, -1")
    vm.wait('gs')
    e(f"s_mov_b32 s66, {2 if nogelu else 4096}")
    L1, L2 = f"g1_chk{hf}", f"g1_ok{hf}"
    e(f"{L1}:")
    tags = [GS + 2 * i + 1 for i in range(16)]
    for op, d in (("min", T), ("max", T + 1)):
        e(f"v_{op}3_u32 v{d}, v{tags[0]}, v{tags[1]}, v{tags[2]}")
        for i in range(3, 15, 2):
            e(f"v_{op}3_u32 v{d}, v{d}, v{tags[i]}, v{tags[i+1]}")
        e(f"v_{op}_u32 v{d}, v{d}, v{tags[15]}")
    e(f"""v_cmp_ne_u32 vcc, s48, v{T}
    v_cmp_ne_u32 s[60:61], s48, v{T+1}
    s_or_b64 vcc, vcc, s[60:61]
    s_cbranch_vccz {L2}
    s_sub_u32 s66, s66, 1
    s_cmp_eq_u32 s66, 0
    s_cbranch_scc1 {L2}""")
    gather()
    e(f"s_waitcnt vmcnt(0)\ns_branch {L1}\n{L2}:")
    for o in (0, 2):
        e(f"v_add3_u32 v{T}, v{T}, v{T}, v{T}") if False else None
    for stp in (16, 8, 4):
        for b in range(0, stp, 4):
            for o in (0, 2):
                e(f"v_add_f32 v{GS+b+o}, v{GS+b+o}, v{GS+b+stp+o}")
    e(f"v_mov_b32 v{GS+1}, v{GS}\nv_mov_b32 v{GS+3}, v{GS+2}")
    e(f"v_and_b32 v{T+2}, 31, v1\nv_lshlrev_b32 v{T+2}, 3, v{T+2}")
    e(f"v_permlane32_swap_b32 v{GS}, v{GS+1}\nv_permlane32_swap_b32 v{GS+2}, v{GS+3}")
    e(f"s_lshl_b32 s6, s3, 8\ns_add_u32 s6, s6, {SCR+2304}")
    e(f"""v_add_f32 v{GS}, v{GS}, v{GS+1}
    v_add_f32 v{GS+2}, v{GS+2}, v{GS+3}
    v_mul_f32 v{GS}, 0x39e38e39, v{GS}
    v_mul_f32 v{GS+2}, 0x39e38e39, v{GS+2}
    v_fma_f32 v{GS+2}, -v{GS}, v{GS}, v{GS+2}
    v_add_f32 v{GS+2}, 0x3727c5ac, v{GS+2}
    v_rsq_f32 v{GS+2}, v{GS+2}
    v_add_u32 v{T+2}, s6, v{T+2}
    v_mul_f32 v{GS+3}, v{GS}, v{GS+2}
    v_lshrrev_b32 v{T+3}, 4, v1
    v_lshlrev_b32 v{T+3}, 6, v{T+3}
    v_add_u32 v{T+3}, s6, v{T+3}
    ds_write_b64 v{T+2}, v[{GS+2}:{GS+3}]""")
    RN = GS + 8
    for q in range(4):
        e(f"ds_read_b128 v[{RN+4*q}:{RN+4*q+3}], v{T+3} offset:{16*q}")
    e(f"s_lshl_b32 s6, s5, 6\ns_add_u32 s6, s6, s58\ns_mul_i32 s6, s6, 9216\ns_add_u32 s62, s6, {z2t[0]*1024}\ns_add_u32 s63, s62, 4096")
    e("s_waitcnt lgkmcnt(0)")
    for t in range(nt):
        p = PZ + 4 * t
        for q in range(4):
            e(f"v_lshlrev_b32 v{T+2*q}, 16, v{p+q}\nv_and_b32 v{T+2*q+1}, 0xffff0000, v{p+q}")
        for q in range(8):
            e(f"v_fma_f32 v{T+q}, v{T+q}, v{RN+2*q}, -v{RN+2*q+1}")
        for q in range(4):
            e(f"v_cvt_pk_bf16_f32 v{p+q}, v{T+2*q}, v{T+2*q+1}")
        e(f"buffer_store_dwordx4 v[{p}:{p+3}], v2, s[20:23], {'s62' if t < 4 else 's63'} offen offset:{(t%4)*1024}")
    if stamp and hf == sw // 4:
        e(f"s_waitcnt vmcnt(0)\ns_cmp_lg_u32 s3, {sw}\ns_cbranch_scc1 g1_end")
        st.end(16)
    e("s_endpgm")


if __name__ == "__main__":
    open("t_g1.s", "w").write(build([gen_g1(stamp=True)]))
```

```python
import sys, re
from common import *
from g1 import gen_g1
from g2a import gen_g2
from g3 import gen_g3
B1 = dict(pf=-1, lr=2, dpos=((8,8,9,10),(8,9,10,11)), q6=99)
def addfl(src, f1="", f2=""):
    cur = None; out = []
    for ln in src.split("\n"):
        m = re.match(r"^(g\d)_kernel:", ln)
        if m: cur = m.group(1)
        if ln.strip().startswith("buffer_store") and "sc1" not in ln and "s[80:83]" not in ln:
            fl = {"g1": f1, "g2": f2}.get(cur, "")
            if fl: ln = ln + " " + fl
        out.append(ln)
    return "\n".join(out)
def full(stamp=False, k1={}, k2={}, k3={}, f1="", f2=""):
    return addfl(build([gen_g1(stamp=stamp, **{**B1, **k1}), gen_g2(stamp=stamp, **k2), gen_g3(stamp=stamp, kidx=2, **k3)]), f1, f2)
if __name__ == "__main__":
    V = dict(a=dict(), b=dict(k1=dict(p3=9)), c=dict(k1=dict(p3=9), f2="sc1"), d=dict(k1=dict(p3=9, pf=-2), f2="sc1"), e=dict(k1=dict(p3=9, pf=None), f2="sc1"))
    for n, kw in V.items():
        open(f"../cdna_kernels/c_{n}.s", "w").write(full(**kw))
```

```python
from mk import *
Z = [28]*2 + [29]*7
B2 = dict(z1s=Z, srt=4, D=4, pprio=1, cprio=0)
F2 = dict(B2, al=3, kps=2, budget=78, mc=2, srt=3, D=3)
V = dict(a=dict(k2=B2), b=dict(k2=B2, f2="sc1"), c=dict(k1=dict(p3=9), k2=B2, f2="sc1"), d=dict(k1=dict(p3=9, pf=None), k2=B2, f2="sc1"), e=dict(k1=dict(pf=None), k2=B2, f2="sc1"), f=dict(k2=F2, f2="sc1"))
for n, kw in V.items():
    open(f"../cdna_kernels/c_{n}.s", "w").write(full(**kw))
```

```python
from common import *

STG = 18432
RING = 6
PARK = RING * STG
XST = 73728
SCR = 155648
LDS = SCR + 4608
X0, B0, B1, WIN, TMP = 16, 160, 200, 232, 248
LEAD = 4
XB = PARK
W3L = XB
NONCE = XB + 49152


def w3unit(k):
    e = k.e
    e("""s_lshl_b32 s67, s2, 2
    s_add_u32 s67, s67, s44
    s_sub_u32 s64, s67, 512
    s_cmp_ge_u32 s67, 736
    s_cselect_b32 s64, s64, s67
    s_mul_i32 s62, s64, 2850
    s_lshr_b32 s62, s62, 16
    s_mul_i32 s63, s62, 23
    s_sub_u32 s63, s64, s63
    s_lshr_b32 s64, s62, 2
    s_and_b32 s62, s62, 3
    s_sub_u32 s49, s63, 1
    s_lshr_b32 s65, s49, 2
    s_mul_i32 s65, s65, 144
    s_and_b32 s49, s49, 3
    s_lshl_b32 s49, s49, 5
    s_add_u32 s49, s49, s65
    s_mul_i32 s65, s62, 576
    s_add_u32 s49, s49, s65
    s_mov_b32 s51, 16
    s_mov_b32 s59, 4
    s_sub_u32 s66, s63, 17
    s_mul_i32 s66, s66, 288
    s_add_u32 s66, s66, s65
    s_add_u32 s66, s66, 128
    s_cmp_ge_u32 s63, 17
    s_cselect_b32 s49, s66, s49
    s_cselect_b32 s51, 144, s51
    s_sub_u32 s66, s63, 19
    s_mul_i32 s66, s66, 36
    s_mul_i32 s65, s62, 144
    s_add_u32 s66, s66, s65
    s_cmp_ge_u32 s63, 19
    s_cselect_b32 s49, s66, s49
    s_cselect_b32 s51, 20, s51
    s_cselect_b32 s65, 1, 0
    s_and_b32 s66, s62, 1
    s_mul_i32 s66, s66, 288
    s_add_u32 s66, s66, 16
    s_cmp_eq_u32 s63, 0
    s_cselect_b32 s49, s66, s49
    s_cselect_b32 s51, 36, s51
    s_cselect_b32 s59, 72, s59
    s_cselect_b32 s65, 1, s65
    s_mov_b32 s100, s65""")
    e("s_mul_i32 s49, s49, 1152\ns_mul_i32 s66, s64, 144\ns_add_u32 s49, s49, s66")
    e("s_mul_i32 s51, s51, 1152\ns_mul_i32 s59, s59, 1152")


def xloads(k):
    e = k.e
    e("""s_lshl_b32 s6, s4, 4
    s_and_b32 s7, s3, 6
    s_lshl_b32 s7, s7, 1
    s_add_u32 s6, s6, s7
    s_and_b32 s7, s3, 1
    s_add_u32 s6, s6, s7
    s_mul_i32 s6, s6, 9216
    s_add_u32 s7, s6, 4608
    s_waitcnt lgkmcnt(0)""")
    k.srd_fin(8, "x")
    for u in range(9):
        for h in range(2):
            d = X0 + 16 * u + 4 * h
            e(f"buffer_load_dwordx4 v[{d}:{d+3}], v0, s[8:11], s{6+h} offen offset:{u*128}")


def stouch(k):
    e = k.e
    for sb, key in ((12, 'win'), (68, 'wout'), (16, 'wqkv'), (60, 'wo'), (76, 'wsp')):
        e(f"s_mul_i32 s6, s3, {SIZES[key]//8}\ns_load_dword s101, s[{sb}:{sb+1}], s6")
    for q in range(3):
        e(f"s_lshl_b32 s6, s3, 21\ns_add_u32 s6, s6, {OFF_Z2N + q*(16<<20)}\ns_load_dword s101, s[20:21], s6")


def srds(k, hf):
    e = k.e
    k.srd_fin(12, "win"); k.srd_fin(16, "wqkv"); k.srd_fin(40, "dbg")
    for s in (24, 28, 32, 36, 72):
        e(f"s_mov_b64 s[{s}:{s+1}], s[20:21]")
    k.srd_fin(72, "ws", size=SZ_W3, off=OFF_W3)
    k.srd_fin(76, "wsp")
    if hf == 1:
        e("s_cmp_eq_u32 s100, 1\ns_cselect_b32 s68, s60, s68\ns_cselect_b32 s69, s61, s69")
        e(f"s_mov_b32 s70, {SIZES['wout']}\ns_cselect_b32 s70, {SIZES['wo']}, s70\ns_and_b32 s69, s69, 0xffff\ns_mov_b32 s71, 0x00020000")
    k.srd_fin(20, "ws", size=SZ_Z, off=OFF_Z2N)
    k.srd_fin(24, "ws", size=SZ_Z, off=OFF_Z1)
    k.srd_fin(28, "ws", size=SZ_Q, off=OFF_Q)
    k.srd_fin(32, "ws", size=SZ_KV, off=OFF_KV)
    k.srd_fin(36, "ws", size=SZ_ST, off=OFF_ST)


def gen_g1(stamp=False, kidx=0, rateA=(4, 3), rateB=(3, 4), nogelu=False, **opt):
    k = Kern("g1_kernel", 256, 512, LDS, 256, sgpr=102)
    st = Stamps(k, stamp, kidx)
    e = k.e
    e("s_cmp_ge_u32 s2, 256\ns_cbranch_scc1 g1_end")
    st.begin()
    k.srd(8, "x"); k.srd(12, "win"); k.srd(16, "wqkv"); k.srd(20, "ws"); k.srd(40, "dbg")
    k.srd(68, "wout"); k.srd(60, "wo"); k.srd(76, "wsp")
    e("s_memrealtime s[52:53]")
    e("v_lshrrev_b32 v2, 6, v0\nv_and_b32 v1, 63, v0")
    e("s_nop 0\nv_readfirstlane_b32 s3, v2")
    lr = opt.get('lr', 3)
    e(f"""s_and_b32 s4, s2, {(16 >> lr) - 1}
    s_lshl_b32 s4, s4, {lr}
    s_bfe_u32 s6, s2, {(lr << 16) | 3}
    s_add_u32 s4, s4, s6
    s_bfe_u32 s5, s2, {((lr - 1) << 16) | (4 - lr)}
    s_lshl_b32 s5, s5, {5 - lr}
    s_lshr_b32 s6, s2, {3 + lr}
    s_add_u32 s5, s5, s6""")
    e("""s_and_b32 s44, s3, 3
    v_lshlrev_b32 v2, 4, v1
    v_lshrrev_b32 v0, 4, v1
    v_and_b32 v4, 8, v1
    v_lshl_or_b32 v0, v4, 1, v0
    v_mul_u32_u24 v0, 1152, v0
    v_and_b32 v4, 7, v1
    v_lshl_add_u32 v0, v4, 4, v0""")
    e("""s_mul_i32 s54, s5, 288
    s_add_u32 s55, s54, 4608
    s_mul_i32 s56, s5, 72
    s_and_b32 s57, s56, 15
    s_and_b32 s56, s56, 0xfffffff0
    s_mov_b32 s47, 0xbdd2d3e8
    s_mov_b32 s50, 0x3f803f80
    s_lshl_b32 s58, s4, 2
    s_add_u32 s58, s58, s44""")
    e("s_cmp_ge_u32 s3, 4\ns_cbranch_scc1 g1_pathB")
    info = {}
    LB = None
    saved = k.L
    bodies = {}
    for hf in (1, 0):
        k.L = []
        body(k, st, hf, info, rateA if hf == 0 else rateB, stamp, nogelu, opt)
        bodies[hf] = k.L
    k.L = saved + bodies[0] + ["g1_pathB:"] + bodies[1]
    e("g1_end:\ns_endpgm")
    return k


def body(k, st, hf, info, rate, stamp, nogelu, opt):
    e = k.e
    pf = opt.get('pf', -1)
    w3s = opt.get('w3s', 23)
    marks = opt.get('marks', ['p', 'm', 'x', 9])
    sw = opt.get('sw', 0)

    def mark(ev):
        if ev in marks:
            st.mid(marks.index(ev))
    vm = Trk(k, "vmcnt", 63)
    lg = Trk(k, "lgkmcnt", 15)

    def xl():
        mark('j')
        xloads(k)
        mark('l')
        for u in range(9):
            for h in range(2):
                vm.issue(("x", u))
    xf = opt.get('xf', 1) or hf == 0
    if xf:
        xl()
        if opt.get('stouch'):
            stouch(k)
    if hf == 1:
        w3unit(k)
    if xf:
        srds(k, hf)
    npc = 2 + hf
    if hf == 0:
        e("s_lshl_b32 s6, s44, 7")
    else:
        e("s_mul_i32 s6, s44, 160\ns_add_u32 s6, s6, 512")
    e("s_lshl_b32 s46, s6, 4")
    e(f"s_cmp_eq_u32 s5, {opt.get('q6', 7)}\ns_cselect_b32 s7, 5, {opt.get('q6d', 4)}")
    T = TMP
    for p in range(npc):
        e(f"""v_add_u32 v{T}, s6, v1
        v_add_u32 v{T}, {64*p}, v{T}
        v_mul_u32_u24 v{T+1}, 3641, v{T}
        v_lshrrev_b32 v{T+1}, 16, v{T+1}
        v_mul_u32_u24 v{T+2}, 18, v{T+1}
        v_sub_u32 v{T+2}, v{T}, v{T+2}
        v_and_b32 v{T+3}, 0x23, v{T+1}
        v_and_b32 v{T+4}, 12, v{T+1}
        v_lshl_or_b32 v{T+3}, v{T+4}, 1, v{T+3}
        v_and_b32 v{T+4}, 16, v{T+1}
        v_lshrrev_b32 v{T+4}, 2, v{T+4}
        v_or_b32 v{T+3}, v{T+3}, v{T+4}
        v_mul_u32_u24 v{7+p}, 9216, v{T+3}
        v_lshl_add_u32 v{7+p}, v{T+2}, 4, v{7+p}
        v_mul_u32_u24 v{10+p}, 3456, v{T+3}
        v_mul_u32_u24 v{T+4}, 43, v{T+2}
        v_lshrrev_b32 v{T+4}, 8, v{T+4}
        v_mul_u32_u24 v{T+5}, 6, v{T+4}
        v_sub_u32 v{T+5}, v{T+2}, v{T+5}
        v_min_u32 v{T+5}, s7, v{T+5}
        v_mul_u32_u24 v{T+4}, 1152, v{T+4}
        v_lshl_add_u32 v{T+4}, v{T+5}, 4, v{T+4}
        v_add_u32 v{10+p}, v{10+p}, v{T+4}""")
        if p:
            e(f"v_subrev_u32 v{7+p}, {1024*p}, v{7+p}\nv_subrev_u32 v{10+p}, {1024*p}, v{10+p}")

    def dma_setup(s):
        ps, q = divmod(s, 9)
        base, stride = [("s55", 589824), ("s54", 589824), ("s56", 221184)][ps]
        e(f"s_add_u32 s45, {base}, {q*stride}\ns_add_u32 m0, s46, {(s % RING)*STG}")

    def dma_piece(s, p):
        vo, srd = (7 + p, "s[12:15]") if s < 18 else (10 + p, "s[16:19]")
        if p == 2:
            e("s_mov_b32 exec_hi, 0")
        else:
            e("s_nop 0")
        if not (opt.get('x_nodma') and s >= LEAD):
            e(f"buffer_load_dwordx4 v{vo}, {srd}, s45 offen offset:{1024*p} lds")
            vm.issue(("dma", s))
        if p == 2:
            e("s_mov_b32 exec_hi, -1")

    F = B1 if hf == 0 else B0

    def wsp_pf(i=0, n=1):
        vm.wait('qpf')
        if n == 1:
            vm.wait('pf')
        e(f"s_lshl_b32 s100, s2, 3\ns_add_u32 s100, s100, s3\ns_lshl_b32 s100, s100, 12")
        sh = opt.get('pfs', 6); NL = 4096 >> sh
        if n > 1 or NL < 64:
            m = ((1 << (NL // n)) - 1) << (i * NL // n)
            e(f"s_mov_b32 exec_lo, {m & 0xffffffff}\ns_mov_b32 exec_hi, {m >> 32}")
        e(f"v_lshlrev_b32 v0, {sh}, v1")
        e(f"buffer_load_dword v0, v0, s[76:79], s100 offen{opt.get('pfm', '')}"); vm.issue('pf')
        if n > 1 or NL < 64:
            e("s_mov_b64 exec, -1")

    LR = opt.get('lr', 3)
    RW = 72 >> LR

    def lanes(n):
        e(f"s_mov_b32 exec_lo, {((1 << n) - 1) & 0xffffffff}\ns_mov_b32 exec_hi, {((1 << n) - 1) >> 32}")

    def win_pf(base):
        vm.wait('pf'); vm.wait('qpf')
        e(f"""s_and_b32 s100, s4, {(1 << LR) - 1}
        s_lshl_b32 s100, s100, 3
        s_add_u32 s100, s100, s3
        s_mul_i32 s100, s100, {RW*9216}
        s_and_b32 s101, {base}, 0xffffff80
        s_add_u32 s100, s100, s101
        v_mul_u32_u24 v0, 43, v1
        v_lshrrev_b32 v0, 7, v0
        v_mul_u32_u24 v0, 8832, v0
        v_lshl_add_u32 v0, v1, 7, v0""")
        lanes(3 * RW)
        e("buffer_load_dword v0, v0, s[12:15], s100 offen\ns_mov_b64 exec, -1"); vm.issue('qpf')

    def qkv_pf():
        e(f"""s_and_b32 s100, s4, {(1 << LR) - 1}
        s_lshl_b32 s100, s100, 3
        s_add_u32 s100, s100, s3
        s_mul_i32 s100, s100, {3*RW*1152}
        s_add_u32 s100, s100, s56
        v_mul_u32_u24 v15, 1152, v1""")
        lanes(3 * RW)
        e("buffer_load_dword v0, v15, s[16:19], s100 offen"); vm.issue('qpf')
        e("buffer_load_dword v15, v15, s[16:19], s100 offen offset:64\ns_mov_b64 exec, -1"); vm.issue('qpf')

    def w3dma():
        U = WIN
        for p in range(5):
            e(f"""v_add_u32 v{U}, {64*p}, v1
            v_mul_u32_u24 v{U+1}, 7282, v{U}
            v_lshrrev_b32 v{U+1}, 16, v{U+1}
            v_mul_u32_u24 v{U+2}, 9, v{U+1}
            v_sub_u32 v{U+2}, v{U}, v{U+2}
            v_lshlrev_b32 v{U+2}, 4, v{U+2}
            v_and_b32 v{U}, 3, v{U+1}
            v_mul_u32_u24 v{U}, 1152, v{U}
            v_add_u32 v{U+2}, v{U+2}, v{U}
            v_bfe_u32 v{U}, v{U+1}, 2, 2
            v_mul_u32_u24 v{U}, s59, v{U}
            v_add_u32 v{U+2}, v{U+2}, v{U}
            v_bfe_u32 v{U}, v{U+1}, 4, 1
            v_mul_u32_u24 v{U}, s51, v{U}
            v_add_u32 v{F+12+4*p}, v{U+2}, v{U}""")

    def w3ld():
        for p in range(5):
            if p == 4:
                e("s_mov_b32 exec_hi, 0")
            e(f"buffer_load_dwordx4 v[{F+12+4*p}:{F+15+4*p}], v{F+12+4*p}, s[68:71], s49 offen"); vm.issue('w3')
        e("s_mov_b32 exec_hi, -1")

    def touch():
        e("s_mov_b64 exec, 1")
        e("s_lshl_b32 s6, s4, 4\ns_add_u32 s6, s6, s5\ns_lshl_b32 s6, s6, 2\ns_add_u32 s6, s6, s44\ns_mul_i32 s6, s6, 9216")
        e(f"buffer_load_dword v{F+12}, off, s[24:27], s6"); vm.issue()
        e("s_lshl_b32 s6, s5, 6\ns_add_u32 s6, s6, s58\ns_mul_i32 s6, s6, 9216")
        e(f"buffer_load_dword v{F+13}, off, s[20:23], s6"); vm.issue()
        e("s_lshl_b32 s6, s5, 7\ns_add_u32 s6, s6, s58\ns_mul_i32 s7, s6, 1536\ns_mul_i32 s6, s6, 2688")
        e(f"buffer_load_dword v{F+14}, off, s[28:31], s7"); vm.issue()
        e(f"buffer_load_dword v{F+15}, off, s[32:35], s6"); vm.issue()
        e("s_lshl_b32 s6, s58, 13\ns_mul_i32 s7, s67, 4608")
        e(f"buffer_load_dword v{F+16}, off, s[36:39], s6"); vm.issue()
        e(f"buffer_load_dword v{F+17}, off, s[72:75], s7"); vm.issue()
        e("s_mov_b64 exec, -1")

    def dma_stage(s):
        dma_setup(s)
        for p in range(npc):
            dma_piece(s, p)

    if opt.get('p1'):
        win_pf('s55')
    dpos = opt.get('dpos', ((8, 8, 8, 8), (-1, -1, 4, 8)))[hf]
    NUP = opt.get('nup', 5)
    if hf == 1 and w3s:
        w3dma()
    e(f"""v_lshrrev_b32 v{T}, 4, v1
    v_and_b32 v{T+1}, 7, v1
    v_and_or_b32 v{T+2}, v1, 8, v{T}
    s_and_b32 s6, s3, 1
    s_lshl_b32 s6, s6, 2
    v_or_b32 v{T+2}, s6, v{T+2}
    v_xor_b32 v{T+2}, v{T+2}, v{T+1}
    v_lshlrev_b32 v{T+2}, 4, v{T+2}
    v_lshl_add_u32 v{T+2}, v{T+1}, 8, v{T+2}
    s_lshr_b32 s6, s3, 1
    s_lshl_b32 s6, s6, 12
    s_add_u32 s6, s6, {XB}
    v_add_u32 v{F}, s6, v{T+2}
    v_subrev_u32 v{F+1}, {2*STG}, v{F}
    v_lshrrev_b32 v{T}, 4, v1
    v_and_b32 v{T+1}, 15, v1
    v_xor_b32 v{T+1}, v{T+1}, v{T}
    v_lshlrev_b32 v{T+1}, 4, v{T+1}
    v_lshl_add_u32 v{T+1}, v{T}, 8, v{T+1}
    s_lshl_b32 s6, s44, 12
    s_add_u32 s6, s6, {XB}
    v_add_u32 v{F+2}, s6, v{T+1}
    v_xor_b32 v{F+3}, 64, v{F+2}
    v_subrev_u32 v{F+5}, {2*STG}, v{F+2}
    v_subrev_u32 v{F+7}, {2*STG}, v{F+3}
    v_lshrrev_b32 v{T}, 2, v1
    v_mul_u32_u24 v{T}, 288, v{T}
    v_and_b32 v{T+1}, 3, v1
    v_lshl_add_u32 v3, v{T+1}, 3, v{T}
    v_add_u32 v4, {3*STG}, v3
    s_add_u32 s6, s57, {32 if hf == 0 else 224}
    v_add_u32 v5, s6, v{T}""")
    if hf == 0:
        e(f"v_and_b32 v{T+1}, 1, v1\nv_mul_u32_u24 v{T+1}, 96, v{T+1}\nv_add_u32 v5, v5, v{T+1}")
    e(f"""v_add_u32 v6, {3*STG}, v5
    s_mul_i32 s6, s44, 9216
    s_add_u32 s6, s6, {PARK + hf*5120}
    v_lshlrev_b32 v13, 2, v1
    v_add_u32 v13, s6, v13""")
    WU, WB = F + 32, F + 12
    if hf == 1 and w3s:
        U = WU
        e(f"""v_lshrrev_b32 v{U}, 2, v1
        v_mul_u32_u24 v{U}, 144, v{U}
        s_mul_i32 s6, s44, 4608
        s_add_u32 s6, s6, {W3L}
        v_add_u32 v{U}, s6, v{U}
        v_and_b32 v{U+1}, 1, v1
        v_lshl_add_u32 v{U+1}, v{U+1}, 3, v{U}
        v_and_b32 v{U+2}, 3, v1
        v_lshl_add_u32 v{U}, v{U+2}, 4, v{U}
        v_lshrrev_b32 v{U+2}, 4, v1
        v_lshlrev_b32 v{U+2}, 3, v{U+2}
        v_and_b32 v{U+3}, 7, v1
        v_add_u32 v{U+2}, v{U+2}, v{U+3}
        v_lshlrev_b32 v{U+2}, 4, v{U+2}""")
    if not xf:
        e("s_waitcnt lgkmcnt(0)")
        srds(k, hf)
        xl()
    for s in range(LEAD):
        if dpos[s] == -1:
            dma_stage(s)
    mark('i')
    S, Q = WIN + 12, WIN + 14
    for u in range(9):
        vm.wait(("x", u))
        mark(('x', u))
        for d in range(4):
            for h in range(2):
                r = X0 + 16 * u + 4 * h + d
                first = (u == 0 and d == 0)
                e(f"v_dot2_f32_bf16 v{S+h}, v{r}, s50, {0 if first else f'v{S+h}'}")
                e(f"v_dot2_f32_bf16 v{Q+h}, v{r}, v{r}, {0 if first else f'v{Q+h}'}")
        for s in range(LEAD):
            if dpos[s] == u:
                dma_stage(s)
    mark('x')
    if pf == -1:
        wsp_pf()
    e("s_nop 2")
    for ctl in ("quad_perm:[1,0,3,2]", "quad_perm:[2,3,0,1]", "row_half_mirror"):
        for r in range(4):
            e(f"v_add_f32_dpp v{S+r}, v{S+r}, v{S+r} {ctl} row_mask:0xf bank_mask:0xf")
    R = F + 4
    for h in range(2):
        e(f"v_mul_f32 v{S+h}, 0x3ae38e39, v{S+h}")
        e(f"v_mul_f32 v{Q+h}, 0x3ae38e39, v{Q+h}")
    for h in range(2):
        e(f"v_fma_f32 v{Q+h}, -v{S+h}, v{S+h}, v{Q+h}")
    for h in range(2):
        e(f"v_add_f32 v{Q+h}, 0x3727c5ac, v{Q+h}")
    for h in range(2):
        e(f"v_rsq_f32 v{R+4*h}, v{Q+h}")
    e("s_nop 0")
    for h in range(2):
        e(f"v_mul_f32 v{R+4*h+2}, v{S+h}, v{R+4*h}")

    def norm(h, u, pk):
        a = X0 + 16 * u + 4 * h
        L = []
        for d in range(4):
            L += [f"v_lshlrev_b32 v{T+2*d}, 16, v{a+d}", f"v_and_b32 v{T+2*d+1}, 0xffff0000, v{a+d}"]
        for d in range(4):
            if pk:
                L.append(f"v_pk_fma_f32 v[{T+2*d}:{T+2*d+1}], v[{T+2*d}:{T+2*d+1}], v[{R+4*h}:{R+4*h+1}], v[{R+4*h+2}:{R+4*h+3}] op_sel_hi:[1,0,0] neg_lo:[0,0,1] neg_hi:[0,0,1]")
            else:
                L += [f"v_fma_f32 v{T+2*d+q}, v{T+2*d+q}, v{R+4*h}, -v{R+4*h+2}" for q in range(2)]
        for d in range(4):
            L.append(f"v_cvt_pk_bf16_f32 v{a+d}, v{T+2*d}, v{T+2*d+1}")
        if opt.get('x_nonorm') and not pk:
            return [lambda: None] * len(L)
        return L

    xdone = set()

    def xw(h, u):
        a = X0 + 16 * u + 4 * h
        if not opt.get('x_nods'):
            ad, o = (F + 1, u * STG) if u < 2 else (F, (u % 3) * 16384)
            e(f"ds_write_b128 v{ad}, v[{a}:{a+3}] offset:{o+2048*h}")
            lg.issue(('xw', u))
        xdone.add((u, h))

    def xr(t, j):
        d = X0 + 8 * t + 4 * j
        if opt.get('x_nord'):
            return
        u = t >> 1
        ad, o = (F + 5 + 2 * (t & 1), u * STG) if u < 2 else (F + 2 + (t & 1), (u % 3) * 16384)
        e(f"ds_read_b128 v[{d}:{d+3}], v{ad} offset:{o+j*2048+(t&1)*1024}")
        lg.issue(('xr', t))

    if opt.get('stouch'):
        e("s_waitcnt lgkmcnt(0)")
    for u in range(NUP):
        for h in range(2):
            for i in norm(h, u, True):
                e(i)
            xw(h, u)
        for s in range(LEAD):
            if dpos[s] == 9 + u:
                dma_stage(s)
    mark('p')

    if hf == 0:
        P = [[(32*t, 0, B0 + 8*t, 'N') for t in range(5)],
             [(32*t, 0, B1 + 8*t, 'T') for t in range(4)],
             [(0, 0, B0, 'T'), (40, 0, B0+8, 'T'), (96, 0, B0+16, 'T'), (136, 0, B0+24, 'T'), (0, 1, B0+32, 'T')]]
        z2t, z1t = list(range(5)), list(range(4))
        BZ2, BZ1 = B0, B1
    else:
        P = [[(32*(5+t), 0, B1 + 8*t, 'N') for t in range(4)],
             [(32*(4+t), 0, B0 + 8*t, 'T') for t in range(5)],
             [(192, 0, B1, 'N'), (232, 0, B1+8, 'N'), (0, 1, B1+16, 'N')]]
        z2t, z1t = list(range(5, 9)), list(range(4, 9))
        BZ2, BZ1 = B1, B0
    frags = [(s, kk, ti) for s in range(27) for kk in range(2) for ti in range(len(P[s // 9]))]
    NF = len(frags)
    cur = dict(stage=-1)
    timed = {}

    def rd(n):
        s, kk, ti = frags[n]
        if kk == 0 and ti == 0:
            vm.wait(("dma", s))
            if s < 8:
                assert (s + 1, 0) in xdone and (s + 1, 1) in xdone, (hf, s)
                lg.wait(('xw', s + 1))
            if 0 < s < 9:
                lg.wait(('xr', 2 * s + 1))
            if s == 9:
                lg.wait('w3r')
            if not (opt.get('x_nobar') and s % 9 > 0):
                e("s_barrier")
            cur['stage'] = s
            mark(s)
            if s == 0:
                xr(0, 0); xr(0, 1)
            if s < 8:
                for q in range(4):
                    timed.setdefault(max(0, n - 3) + 1 + q + hf * 0, []).append(lambda q=q, s=s: xr(2 * s + 2 + q // 2, q & 1))
            if 'bw' in info and hf == 1 and 'bvis' not in info and not lg.pending('bw'):
                info['bvis'] = s
            if s == 18:
                e("v_add_u32 v3, s57, v3\nv_add_u32 v4, s57, v4")
            for q, sd in enumerate({0: [], 1: [4, 5]}.get(s, [s + LEAD])):
                for p in range(npc if sd < 27 else 0):
                    def f(p=p, sd=sd):
                        if p == 0:
                            dma_setup(sd)
                        dma_piece(sd, p)
                    timed.setdefault(n - 2 + (npc * q + p if s == 1 else 2 * p), []).append(f)
        col, kind, _, _ = P[s // 9][ti]
        b = s % RING
        a = (3 if kind == 0 else 5) + (1 if b >= 3 else 0)
        o = (b % 3) * STG + kk * 32 * 288 + col
        w = WIN + 4 * (n % 4)
        e(f"ds_read_b64_tr_b16 v[{w}:{w+1}], v{a} offset:{o}")
        e(f"ds_read_b64_tr_b16 v[{w+2}:{w+3}], v{a} offset:{o+16*288}")
        lg.issue(None); lg.issue(("f", n))
        if n == 2:
            xr(1, 0); xr(1, 1)

    fill = []

    def gelu4(acc):
        n = len(acc)
        L = []
        L += [f"v_fmaak_f32 v{T+i}, v{a}, v{a}, 0x41b2e92f" for i, a in enumerate(acc)]
        L += [f"v_mul_f32 v{T+4+i}, s47, v{a}" for i, a in enumerate(acc)]
        L += [f"v_mul_f32 v{T+i}, v{T+i}, v{T+4+i}" for i in range(n)]
        L += [f"v_exp_f32 v{T+i}, v{T+i}" for i in range(n)]
        L += [f"v_add_f32 v{T+i}, 1.0, v{T+i}" for i in range(n)]
        L += [f"v_rcp_f32 v{T+i}, v{T+i}" for i in range(n)]
        L += [f"v_mul_f32 v{T+4+i}, v{a}, v{T+i}" for i, a in enumerate(acc)]
        return L

    def dsop(txt, tag=None):
        def f():
            e(txt); lg.issue(tag)
        return f

    def vmop(txt, tag=None):
        def f():
            e(txt); vm.issue(tag)
        return f

    def z2fill():
        L = []
        nt = len(z2t)
        for j in range(2):
            for rp in range(2):
                for p0 in range(0, nt, 2):
                    tl = [t for t in (p0, p0 + 1) if t < nt]
                    acc = [BZ2 + 8*t + 4*j + 2*rp + r for t in tl for r in range(2)]
                    L += gelu4(acc)
                    for i, t in enumerate(tl):
                        L.append(f"v_cvt_pk_bf16_f32 v{T+2*i}, v{T+4+2*i}, v{T+5+2*i}")
                    for r in range(2):
                        sS = BZ2 + 4*j + 2*rp + r
                        sQ = sS + 8
                        if p0 == 0:
                            L += [f"v_add_f32 v{sS}, v{T+4+r}, v{T+6+r}", f"v_mul_f32 v{sQ}, v{T+4+r}, v{T+4+r}"]
                        else:
                            L += [f"v_add_f32 v{sS}, v{sS}, v{T+4+r}", f"v_fmac_f32 v{sQ}, v{T+4+r}, v{T+4+r}"]
                    for i, t in enumerate(tl):
                        L.append(dsop(f"ds_write_b32 v13, v{T+2*i} offset:{(t*4 + 2*j + rp)*256}"))
                    if len(tl) == 2:
                        for r in range(2):
                            sS = BZ2 + 4*j + 2*rp + r
                            sQ = sS + 8
                            if p0:
                                L.append(f"v_add_f32 v{sS}, v{sS}, v{T+6+r}")
                            L.append(f"v_fmac_f32 v{sQ}, v{T+6+r}, v{T+6+r}")
        L.append("s_nop 1")
        for bm, src in (("0x3", 0), ("0xc", 4)):
            for q in range(2):
                for r in range(4):
                    a = BZ2 + 8*q + r
                    L.append(f"v_add_f32_dpp v{a}, v{a+src}, v{a+src} row_mirror row_mask:0xf bank_mask:{bm}")
        for bm, src in (("0x5", 0), ("0xa", 2)):
            for q in range(2):
                for r in range(2):
                    a = BZ2 + 8*q + r
                    L.append(f"v_add_f32_dpp v{a}, v{a+src}, v{a+src} row_half_mirror row_mask:0xf bank_mask:{bm}")
        for ctl in ("quad_perm:[1,0,3,2]", "quad_perm:[2,3,0,1]"):
            for q in range(2):
                for r in range(2):
                    a = BZ2 + 8*q + r
                    L.append(f"v_add_f32_dpp v{a}, v{a}, v{a} {ctl} row_mask:0xf bank_mask:0xf")
        L.append("s_mov_b32 s60, 0xaaaaaaaa\ns_mov_b32 s61, 0xaaaaaaaa")
        L.append(f"s_lshl_b32 s6, s44, 9\ns_add_u32 s6, s6, {SCR+256}")
        L.append(f"v_lshlrev_b32 v{T+7}, 3, v1")
        L.append(f"v_add_u32 v{T+7}, s6, v{T+7}")
        if hf == 1:
            L.append(f"v_cndmask_b32 v{T}, v{BZ2}, v{BZ2+1}, s[60:61]")
            L.append(f"v_cndmask_b32 v{T+1}, v{BZ2+8}, v{BZ2+9}, s[60:61]")
            def f():
                e(f"ds_write_b64 v{T+7}, v[{T}:{T+1}]"); lg.issue('bw'); info['bw'] = True
            L.append(f)
        else:
            L.append(f"v_cndmask_b32 v{T}, v{BZ2}, v{BZ2+1}, s[60:61]")
            L.append(f"v_cndmask_b32 v{T+2}, v{BZ2+8}, v{BZ2+9}, s[60:61]")
            L.append(("hold", info['bvis']))
            L.append(dsop(f"ds_read_b64 v[{T+4}:{T+5}], v{T+7}", 'br'))
            L.append(f"v_lshrrev_b32 v{T+6}, 2, v1")
            L.append(f"v_and_b32 v{T+7}, 1, v1")
            L.append(f"v_lshl_or_b32 v{T+6}, v{T+6}, 1, v{T+7}")
            L.append(f"v_lshlrev_b32 v{T+6}, 4, v{T+6}")
            L.append(f"v_mov_b32 v{T+1}, s48")
            L.append(f"v_mov_b32 v{T+3}, s48")
            L.append("s_lshl_b32 s6, s58, 4\ns_add_u32 s6, s6, s5\ns_lshl_b32 s6, s6, 9")
            L.append(("skip", 4))
            L.append(lambda: lg.wait('br'))
            L.append(f"v_add_f32 v{T}, v{T}, v{T+4}")
            L.append(f"v_add_f32 v{T+2}, v{T+2}, v{T+5}")
            L.append(vmop(f"s_mov_b32 exec_lo, 0x33333333\ns_mov_b32 exec_hi, 0x33333333\n"
                          f"buffer_store_dwordx4 v[{T}:{T+3}], v{T+6}, s[36:39], s6 offen sc1\ns_mov_b64 exec, -1\ns_nop 0"))
        return L

    def z1fill():
        L = []
        L.append(f"s_lshl_b32 s6, s4, 4\ns_add_u32 s6, s6, s5\ns_lshl_b32 s6, s6, 2\ns_add_u32 s6, s6, s44\n"
                 f"s_mul_i32 s6, s6, 9216\ns_add_u32 s62, s6, {z1t[0]*1024}\ns_add_u32 s63, s62, 4096")
        for i, t in enumerate(z1t):
            b = BZ1 + 8 * i
            for j in range(2):
                L += gelu4([b + 4*j + r for r in range(4)])
                L.append(f"v_cvt_pk_bf16_f32 v{b+2*j}, v{T+4}, v{T+5}")
                L.append(f"v_cvt_pk_bf16_f32 v{b+2*j+1}, v{T+6}, v{T+7}")
            if not opt.get('nost'):
                L.append(vmop(f"buffer_store_dwordx4 v[{b}:{b+3}], v2, s[24:27], {'s62' if i < 4 else 's63'} offen offset:{(i%4)*1024}"))
        return L

    skip = [0]

    def pump(n):
        while n > 0 and fill:
            if skip[0] > 0:
                skip[0] -= 1
                return
            it = fill[0]
            if isinstance(it, tuple):
                if it[0] == "hold":
                    if cur['stage'] < it[1]:
                        return
                    fill.pop(0)
                    continue
                skip[0] = it[1]
                fill.pop(0)
                continue
            fill.pop(0)
            it() if callable(it) else e(it)
            n -= 1

    def flush():
        skip[0] = 0
        while fill:
            assert not (isinstance(fill[0], tuple) and fill[0][0] == "hold" and cur['stage'] < fill[0][1])
            skip[0] = 0
            pump(1000)

    GS = X0

    def gather():
        e("s_lshl_b32 s6, s58, 13\ns_add_u32 s7, s6, 4096")
        for q in range(8):
            e(f"buffer_load_dwordx4 v[{GS+4*q}:{GS+4*q+3}], v2, s[36:39], s{6+q//4} offen offset:{(q%4)*1024} sc1")
            vm.issue('gs')

    PZ = X0 + 32
    zn = opt.get('zn', 0)

    def pzreads():
        return [dsop(f"ds_read2st64_b32 v[{PZ+4*t+2*q}:{PZ+4*t+2*q+1}], v13 offset0:{t*4+2*q} offset1:{t*4+2*q+1}", 'pz')
                for t in range(len(z2t)) for q in range(2)]

    def znfill():
        L = []
        def chk():
            vm.wait('gs')
            e(f"s_mov_b32 s66, {2 if nogelu else 4096}")
            L1, L2 = f"g1_chk{hf}", f"g1_ok{hf}"
            e(f"{L1}:")
            tags = [GS + 2 * i + 1 for i in range(16)]
            for op, d in (("min", T), ("max", T + 1)):
                e(f"v_{op}3_u32 v{d}, v{tags[0]}, v{tags[1]}, v{tags[2]}")
                for i in range(3, 15, 2):
                    e(f"v_{op}3_u32 v{d}, v{d}, v{tags[i]}, v{tags[i+1]}")
                e(f"v_{op}_u32 v{d}, v{d}, v{tags[15]}")
            e(f"""v_cmp_ne_u32 vcc, s48, v{T}
            v_cmp_ne_u32 s[60:61], s48, v{T+1}
            s_or_b64 vcc, vcc, s[60:61]
            s_cbranch_vccz {L2}
            s_sub_u32 s66, s66, 1
            s_cmp_eq_u32 s66, 0
            s_cbranch_scc1 {L2}""")
            q0 = list(vm.q)
            gather()
            vm.q = q0
            e(f"s_waitcnt vmcnt(0)\ns_branch {L1}\n{L2}:")
        L.append(chk)
        for stp in (16, 8, 4):
            for b in range(0, stp, 4):
                for o in (0, 2):
                    L.append(f"v_add_f32 v{GS+b+o}, v{GS+b+o}, v{GS+b+stp+o}")
        L += f"""v_mov_b32 v{GS+1}, v{GS}
        v_mov_b32 v{GS+3}, v{GS+2}
        v_and_b32 v{T+2}, 31, v1
        v_lshlrev_b32 v{T+2}, 3, v{T+2}
        v_permlane32_swap_b32 v{GS}, v{GS+1}
        v_permlane32_swap_b32 v{GS+2}, v{GS+3}
        s_lshl_b32 s60, s3, 8
        s_add_u32 s60, s60, {SCR+2304}
        v_add_f32 v{GS}, v{GS}, v{GS+1}
        v_add_f32 v{GS+2}, v{GS+2}, v{GS+3}
        v_mul_f32 v{GS}, 0x39e38e39, v{GS}
        v_mul_f32 v{GS+2}, 0x39e38e39, v{GS+2}
        v_fma_f32 v{GS+2}, -v{GS}, v{GS}, v{GS+2}
        v_add_f32 v{GS+2}, 0x3727c5ac, v{GS+2}
        v_rsq_f32 v{GS+2}, v{GS+2}
        v_add_u32 v{T+2}, s60, v{T+2}
        v_mul_f32 v{GS+3}, v{GS}, v{GS+2}
        v_lshrrev_b32 v{T+3}, 4, v1
        v_lshlrev_b32 v{T+3}, 6, v{T+3}
        v_add_u32 v{T+3}, s60, v{T+3}""".split("\n")
        L.append(dsop(f"ds_write_b64 v{T+2}, v[{GS+2}:{GS+3}]"))
        RN = GS + 8
        for q in range(4):
            L.append(dsop(f"ds_read_b128 v[{RN+4*q}:{RN+4*q+3}], v{T+3} offset:{16*q}", 'rn'))
        L.append(f"s_lshl_b32 s60, s5, 6\ns_add_u32 s60, s60, s58\ns_mul_i32 s60, s60, 9216\ns_add_u32 s62, s60, {z2t[0]*1024}\ns_add_u32 s63, s62, 4096")
        L.append(("skip", 3))
        L.append(lambda: lg.wait('rn'))
        for t in range(len(z2t)):
            p = PZ + 4 * t
            for q in range(4):
                L += [f"v_lshlrev_b32 v{T+2*q}, 16, v{p+q}", f"v_and_b32 v{T+2*q+1}, 0xffff0000, v{p+q}"]
            for q in range(8):
                L.append(f"v_fma_f32 v{T+q}, v{T+q}, v{RN+2*q}, -v{RN+2*q+1}")
            for q in range(4):
                L.append(f"v_cvt_pk_bf16_f32 v{p+q}, v{T+2*q}, v{T+2*q+1}")
            L.append(vmop(f"buffer_store_dwordx4 v[{p}:{p+3}], v2, s[20:23], {'s62' if t < 4 else 's63'} offen offset:{(t%4)*1024}"))
        return L

    for u in range(NUP, 9):
        fill += norm(0, u, False) + [("hold", u - 3), lambda u=u: xw(0, u)] + norm(1, u, False) + [lambda u=u: xw(1, u)]
    if opt.get('prio'):
        e(f"s_setprio {opt['prio'][hf]}")
    for n in range(3):
        rd(n)
    if pf == -2:
        wsp_pf()
    if hf == 0:
        e("s_cmp_lg_u32 s3, 0\ns_cbranch_scc1 g1_nononce")
        e("""s_or_b32 s52, s52, 1
        s_lshl_b32 s6, s4, 4
        v_mov_b32 v14, s52
        v_mov_b32 v15, 0
        s_mov_b64 exec, 1
        buffer_atomic_cmpswap v[14:15], off, s[40:43], s6 sc0 sc1
        s_mov_b64 exec, -1
        g1_nononce:""")
    if hf == 1 and w3s and opt.get('w3p', -1) == -1:
        w3ld()
    for n in range(NF):
        s, kk, ti = frags[n]
        ps = s // 9
        if kk == 0 and ti == 0 and s % 9 == 0 and ps > 0:
            flush()
            if not nogelu:
                fill += [("skip", 4)] + (z2fill() if ps == 1 else z1fill())
                if ps == 2 and zn:
                    fill += [("hold", max(22, zn + opt.get('zd', 2)))] + pzreads() + znfill()
        if kk == 0 and ti == 0 and s == 5:
            if hf == 0:
                e(f"""s_cmp_lg_u32 s3, 0
                s_cbranch_scc1 g1_nn2
                v_readfirstlane_b32 s6, v14
                s_cmp_eq_u32 s6, 0
                s_cselect_b32 s6, s52, s6
                v_mov_b32 v14, s6
                v_mov_b32 v15, {NONCE}
                ds_write_b32 v15, v14
                s_waitcnt lgkmcnt(0)
                g1_nn2:""")
        if kk == 0 and ti == 0 and s == 7:
            e(f"v_mov_b32 v15, {NONCE}\nds_read_b32 v14, v15"); lg.issue('nonce')
        if kk == 0 and ti == 0 and s == 8:
            lg.wait('nonce')
            e("v_readfirstlane_b32 s48, v14")
        if kk == 0 and ti == 0 and s == (zn or 25):
            gather()
        if hf == 1 and w3s and (s, kk, ti) == (opt.get('w3p', -1), 1, 0):
            w3ld()
        if kk == 0 and ti == 1 and s == opt.get('p2'):
            win_pf('s54')
        if kk == 0 and ti == 1 and s == opt.get('p3'):
            assert s >= 9
            qkv_pf()
        if kk == 0 and ti == 1 and s == pf:
            wsp_pf()
        if kk == 0 and ti == 1 and isinstance(pf, tuple) and s - hf in pf:
            wsp_pf(pf.index(s - hf), len(pf))
        n8 = frags.index((8, 0, 0))
        if hf == 1 and w3s and n == n8 - 7:
            assert cur['stage'] >= 7
            vm.wait('w3')
            e(f"s_mul_i32 s6, s44, 4608\ns_add_u32 s6, s6, {W3L}\nv_add_u32 v{WU+3}, s6, v2")
        if hf == 1 and w3s and n8 - 7 <= n < n8 - 2:
            p = n - (n8 - 7)
            if p == 4:
                e("s_mov_b32 exec_hi, 0")
            e(f"ds_write_b128 v{WU+3}, v[{WB+4*p}:{WB+4*p+3}] offset:{1024*p}"); lg.issue()
            if p == 4:
                e("s_mov_b32 exec_hi, -1")
        if hf == 1 and w3s and n == n8:
            for t in range(4):
                for hh in range(2):
                    e(f"ds_read_b64_tr_b16 v[{WB+4*t+2*hh}:{WB+4*t+2*hh+1}], v{WU} offset:{hh*16*144 + 64*(t>>1) + 8*(t&1)}")
                    lg.issue('w3r')
            for hh in range(2):
                e(f"ds_read_b64_tr_b16 v[{WB+16+2*hh}:{WB+16+2*hh+1}], v{WU+1} offset:{hh*16*144 + 128}")
                lg.issue('w3r')
        if hf == 1 and w3s and n == n8 + 4:
            lg.wait('w3r')
            e("s_cmp_ge_u32 s67, 736\ns_cbranch_scc1 g1_now3")
            e("s_mul_i32 s6, s67, 4608\ns_add_u32 s7, s6, 4096")
            for t in range(4):
                e(f"buffer_store_dwordx4 v[{WB+4*t}:{WB+4*t+3}], v2, s[72:75], s6 offen offset:{1024*t}")
            e("s_mov_b32 exec_lo, 0x00ff00ff\ns_mov_b32 exec_hi, 0x00ff00ff")
            e(f"buffer_store_dwordx4 v[{WB+16}:{WB+19}], v{WU+2}, s[72:75], s7 offen")
            e("s_mov_b64 exec, -1\ng1_now3:")
        if ps == 0:
            lg.wait(('xr', 2 * s + kk))
        lg.wait(("f", n))
        _, _, acc, ori = P[ps][ti]
        t = (s % 9) * 2 + kk
        w = WIN + 4 * (n % 4)
        for j in range(2):
            x = X0 + 8 * t + 4 * j
            c = acc + 4 * j
            A, B = (x, w) if ori == 'N' else (w, x)
            src = "0" if t == 0 else f"v[{c}:{c+3}]"
            e(f"v_mfma_f32_16x16x32_bf16 v[{c}:{c+3}], v[{A}:{A+3}], v[{B}:{B+3}], {src}")
            if j == 0 and n + 3 < NF:
                pass
            pump(rate[ps - 1] if ps else opt.get('r0', ((1, 2), (2, 2)))[hf][j])
        if n + 3 < NF:
            rd(n + 3) if False else None
        for f in timed.pop(n, []):
            f()
        if n + 3 < NF:
            rd(n + 3)
    assert not timed, timed.keys()
    k.left = getattr(k, 'left', []) + [len(fill)]
    mark('m')
    flush()
    if not zn:
        for f in pzreads():
            f()
    e("s_nop 4")
    if hf == 0:
        e(f"v_mul_u32_u24 v{T+7}, 12, v1")
        e(f"s_lshl_b32 s6, s5, 7\ns_add_u32 s6, s6, s58\ns_mul_i32 s62, s6, 1536\ns_add_u32 s63, s62, {64*1536}")
        e(f"s_mul_i32 s64, s6, 2688\ns_add_u32 s65, s64, {64*2688}")
        e("s_mov_b32 s60, -1\ns_mov_b32 s61, 0")
        TT = B0 + 32
        for j in range(2):
            for hh in range(2):
                e(f"v_cvt_pk_bf16_f32 v{T+2*j+hh}, v{TT+4*j+2*hh}, v{TT+4*j+2*hh+1}")
        for ti in range(4):
            for j in range(2):
                c = B0 + 8 * ti + 4 * j
                e(f"v_cvt_pk_bf16_f32 v{c}, v{c}, v{c+1}\nv_cvt_pk_bf16_f32 v{c+1}, v{c+2}, v{c+3}")
                if ti >= 2:
                    e(f"v_mov_b32 v{c+2}, v{T+2*j+(ti&1)}")
                else:
                    e(f"v_mov_b32 v{c+2}, 0\nv_cndmask_b32 v{c+3}, 0, v{T+2*j+ti}, s[60:61]")
        for j in range(2):
            for ti in range(2):
                c = B0 + 8 * ti + 4 * j
                e(f"v_permlane16_swap_b32 v{c+2}, v{c+3}")
        for ti in (2, 3, 0, 1):
            for j in range(2):
                c = B0 + 8 * ti + 4 * j
                srd = "s[28:31]" if ti < 2 else "s[32:35]"
                e(f"buffer_store_dwordx3 v[{c}:{c+2}], v{T+7}, {srd}, s{62+ti} offen offset:{768*j}")
                vm.issue()
    else:
        e(f"s_lshl_b32 s6, s5, 7\ns_add_u32 s6, s6, s58\ns_mul_i32 s64, s6, 2688\ns_add_u32 s65, s64, {64*2688}")
        e(f"""v_bfe_u32 v{T+7}, v1, 1, 1
        v_mul_u32_u24 v{T+7}, {64*2688}, v{T+7}
        v_and_b32 v{T+6}, 1, v1
        v_lshl_add_u32 v{T+7}, v{T+6}, 6, v{T+7}
        v_lshrrev_b32 v{T+6}, 4, v1
        v_lshl_add_u32 v{T+7}, v{T+6}, 4, v{T+7}""")
        for ti in range(3):
            c = B1 + 8 * ti
            for q in range(4):
                e(f"v_cvt_pk_bf16_f32 v{c+q}, v{c+2*q}, v{c+2*q+1}")
        for ti in range(2):
            c = B1 + 8 * ti
            e(f"buffer_store_dwordx4 v[{c}:{c+3}], v2, s[32:35], s{64+ti} offen offset:1536")
            vm.issue()
        c = B1 + 16
        e("s_mov_b32 exec_lo, 0x000f000f\ns_mov_b32 exec_hi, 0x000f000f")
        e(f"buffer_store_dwordx4 v[{c}:{c+3}], v{T+7}, s[32:35], s64 offen offset:2560")
        vm.issue()
        e("s_mov_b64 exec, -1")
    if not zn:
        fill += znfill()
        flush()
    if stamp and hf == sw // 4:
        e(f"s_waitcnt vmcnt(0)\ns_cmp_lg_u32 s3, {sw}\ns_cbranch_scc1 g1_end")
        st.end(16)
    e("s_endpgm")


if __name__ == "__main__":
    open("t_g1.s", "w").write(build([gen_g1(stamp=True)]))
```

```python
from mk import *
import sys
Z = [28]*2 + [29]*7
B2 = dict(z1s=Z, srt=4, D=4, pprio=1, cprio=0)
V = eval(sys.argv[1])
for n, kw in V.items():
    k1 = {**dict(p3=9, zn=21), **kw.get('k1', {})}; k2 = {**B2, **kw.get('k2', {})}
    print(n, gen_g1(**{**B1, **k1}).left)
    open(f"v_{n}.s", "w").write(full(stamp=True, k1=k1, k2=k2, k3=kw.get('k3', {}), f2="sc1", f1=kw.get("f1", "")))
    if len(sys.argv) > 2:
        open(f"../cdna_kernels/c_{n}.s", "w").write(full(k1=k1, k2=k2, k3=kw.get('k3', {}), f2="sc1", f1=kw.get("f1", "")))
```
